```python
import torch

def _softmax(x, axis=-1):
    return torch.softmax(x, dim=axis)
def _gelu(x):
    return torch.nn.functional.gelu(x, approximate="tanh")
def _silu(x):
    return torch.nn.functional.silu(x)
def _sigmoid(x):
    return torch.sigmoid(x)
def _layernorm(x, axis=-1, eps=1e-5):
    m = x.mean(dim=axis, keepdim=True)
    v = x.var(dim=axis, keepdim=True, unbiased=False)
    return (x - m) / torch.sqrt(v + eps)
def _scatter_add(tgt, idx, src, axis=0):
    return tgt.clone().index_add_(axis, idx, src)
def _segment_sum(src, seg, n):
    out = torch.zeros((n,) + src.shape[1:], dtype=src.dtype)
    return out.index_add_(0, seg, src)
def _pad(x, pw):
    flat = tuple(v for pair in reversed(pw) for v in pair)
    return torch.nn.functional.pad(x, flat)

kernel_name = 'gated_mix__mha_block__ssm_conv_s4d__prompt'

def setup_inputs():

    _w = (lambda a: (lambda t: t.to(torch.bfloat16) if t.is_floating_point() else t)(torch.as_tensor(a)))
    def _A_setup():
        B, S, D, H = 1, 2048, 576, 32
        return {
            "x": _w((lambda *s: torch.randn(*s, dtype=torch.bfloat16) * 0.05)(B, S, D)),
            "wqkv": _w((lambda *s: torch.randn(*s, dtype=torch.bfloat16) * 0.8)(D, 3 * D)),
            "wo": _w((lambda *s: torch.randn(*s, dtype=torch.bfloat16) * 0.05)(D, D)),
        }
    _A_in = _A_setup()

    def _B_setup():
        Bsz, L, D, N = 1, 2048, 576, 128
        return {
            "u": _w((lambda *s: torch.randn(*s, dtype=torch.bfloat16) * 0.05)(Bsz, L, D)),
            "log_A_real": _w((lambda *s: torch.randn(*s, dtype=torch.bfloat16) * 6.4)(D, N) * 0.5),
            "A_imag": _w((lambda *s: torch.randn(*s, dtype=torch.bfloat16) * 0.1)(D, N) * 3.14),
            "C_real": _w((lambda *s: torch.randn(*s, dtype=torch.bfloat16) * 0.4)(D, N) / N ** 0.5),
            "C_imag": _w((lambda *s: torch.randn(*s, dtype=torch.bfloat16) * 0.4)(D, N) / N ** 0.5),
            "log_dt": _w((lambda *s: torch.randn(*s, dtype=torch.bfloat16) * 0.1)(D) * 0.5 - 4.0),
            "D_skip": _w((lambda *s: torch.randn(*s, dtype=torch.bfloat16) * 0.1)(D)),
        }
    _B_in = _B_setup()

    return {
        "A_x": _A_in["x"],
        "A_wqkv": _A_in["wqkv"],
        "A_wo": _A_in["wo"],
        "B_u": _B_in["u"],
        "B_log_A_real": _B_in["log_A_real"],
        "B_A_imag": _B_in["A_imag"],
        "B_C_real": _B_in["C_real"],
        "B_C_imag": _B_in["C_imag"],
        "B_log_dt": _B_in["log_dt"],
        "B_D_skip": _B_in["D_skip"],
        "gate_w": _w((lambda *s: torch.randn(*s, dtype=torch.bfloat16) * 0.05)(576) * 16.0),
    }

def reference(A_x, A_wqkv, A_wo, B_u, B_log_A_real, B_A_imag, B_C_real, B_C_imag, B_log_dt, B_D_skip, gate_w):
    def _A_ref(x, wqkv, wo):
        B, S, D = x.shape
        H = 32
        Dh = D // H
        qkv = (lambda x, *d: x.permute(*d))((x @ wqkv).reshape(B, S, 3, H, Dh), 2, 0, 3, 1, 4)
        q, k, v = qkv[0], qkv[1], qkv[2]
        scores = torch.einsum("bhqd,bhkd->bhqk", q, k) * (Dh ** -0.5)
        p = _softmax(scores, axis=-1)
        o = torch.einsum("bhqk,bhkd->bhqd", p, v)
        return (lambda x, *d: x.permute(*d))(o, 0, 2, 1, 3).reshape(B, S, D) @ wo

    def _B_ref(u, log_A_real, A_imag, C_real, C_imag, log_dt, D_skip):
        L = u.shape[1]
        dt = torch.exp(log_dt)
        A = -torch.exp(log_A_real) + 1j * A_imag
        C = (C_real + 1j * C_imag) * dt[:, None]
        pos = (lambda x, dt: x.to(dt))(torch.arange(L), log_dt.dtype)
        P = torch.exp((A * dt[:, None])[:, :, None] * pos[None, None, :])
        K = 2.0 * torch.einsum("dn,dnl->dl", C, P).real
        L2 = 2 * L
        u_t = (lambda x, *d: x.permute(*d))(u, 0, 2, 1)
        Kf = (lambda x, *a, **k: torch.fft.rfft(x.float(), *a, **k))(K, L2)
        Uf = (lambda x, *a, **k: torch.fft.rfft(x.float(), *a, **k))(u_t, L2)
        y = (lambda x, *a, **k: torch.fft.irfft(x, *a, **k).to(torch.bfloat16))(Uf * Kf[None, :, :], L2)[:, :, :L]
        y = (lambda x, *d: x.permute(*d))(y, 0, 2, 1)
        return y + u * D_skip[None, None, :]

    x = A_x
    g = _sigmoid((x * gate_w).sum(-1, keepdims=True))
    a = _A_ref(x, A_wqkv, A_wo)
    b = _B_ref(x, B_log_A_real, B_A_imag, B_C_real, B_C_imag, B_log_dt, B_D_skip)
    return g * a + (1 - g) * b
```

```python
import re

VCC = (1106, 1107)
EXEC = (1126, 1127)
M0 = 1124
SCC = 1200

_re_vr = re.compile(r"^v\[(\d+):(\d+)\]$")
_re_v = re.compile(r"^v(\d+)$")
_re_sr = re.compile(r"^s\[(\d+):(\d+)\]$")
_re_s = re.compile(r"^s(\d+)$")


def v(i):
    return "v%d" % i


def vr(i, n):
    assert n >= 1
    return "v%d" % i if n == 1 else "v[%d:%d]" % (i, i + n - 1)


def s(i):
    return "s%d" % i


def sr(i, n):
    return "s%d" % i if n == 1 else "s[%d:%d]" % (i, i + n - 1)


def regs_of(opnd):
    o = opnd.strip()
    if o.startswith("-") or o.startswith("|"):
        o = o.strip("-|")
    m = _re_vr.match(o)
    if m:
        return list(range(int(m.group(1)), int(m.group(2)) + 1))
    m = _re_v.match(o)
    if m:
        return [int(m.group(1))]
    m = _re_sr.match(o)
    if m:
        return [1000 + i for i in range(int(m.group(1)), int(m.group(2)) + 1)]
    m = _re_s.match(o)
    if m:
        return [1000 + int(m.group(1))]
    if o == "vcc":
        return list(VCC)
    if o == "exec":
        return list(EXEC)
    if o == "m0":
        return [M0]
    if o == "vcc_lo":
        return [VCC[0]]
    if o == "exec_lo":
        return [EXEC[0]]
    return []


TRANS = ("v_exp_f32", "v_log_f32", "v_rcp_f32", "v_rsq_f32", "v_sqrt_f32", "v_sin_f32", "v_cos_f32",
         "v_rcp_iflag_f32")
MFMA_INFO = {
    "v_mfma_f32_32x32x16_bf16": (8, "xdl", 16),
    "v_mfma_f32_16x16x32_bf16": (4, "xdl", 4),
    "v_mfma_f32_32x32x2_f32": (16, "sgemm", 16),
    "v_mfma_f32_16x16x4_f32": (8, "sgemm", 4),
}


class Ins:
    __slots__ = ("op", "opnds", "mods", "kind", "wr", "rd", "text", "label", "comment", "flags")

    def __init__(self, op, opnds, mods="", comment=""):
        self.op = op
        self.opnds = [str(o) for o in opnds]
        self.mods = mods
        self.comment = comment
        self.label = None
        self.flags = set()
        self.classify()

    def classify(self):
        op = self.op
        O = self.opnds
        wr, rd = [], []
        R = regs_of
        if op.startswith("v_mfma"):
            self.kind = "mfma"
            wr = R(O[0])
            rd = R(O[1]) + R(O[2]) + R(O[3])
        elif op.startswith("v_"):
            self.kind = "trans" if op in TRANS else "valu"
            if op.startswith("v_cmp"):
                wr = R(O[0])
                rd = sum((R(x) for x in O[1:]), [])
                if op.startswith("v_cmpx"):
                    wr = wr + list(EXEC)
            elif op.startswith("v_readfirstlane") or op.startswith("v_readlane"):
                wr = R(O[0])
                rd = sum((R(x) for x in O[1:]), [])
                self.flags.add("readlane")
            elif op.startswith("v_permlane") or op.startswith("v_swap"):
                wr = R(O[0]) + R(O[1])
                rd = R(O[0]) + R(O[1])
                self.flags.add("permlane")
            else:
                wr = R(O[0])
                rd = sum((R(x) for x in O[1:]), [])
                base = op[:-4] if op.endswith("_e32") or op.endswith("_e64") else op
                if base in ("v_cndmask_b32",) and len(O) == 3:
                    rd += list(VCC)
                if base in ("v_add_co_u32", "v_sub_co_u32", "v_subrev_co_u32", "v_addc_co_u32", "v_subb_co_u32"):
                    wr = R(O[0]) + R(O[1])
                    rd = sum((R(x) for x in O[2:]), [])
                if base in ("v_fmac_f32", "v_mac_f32", "v_pk_fmac_f16", "v_dot2c_f32_bf16", "v_fmaak_f32x"):
                    rd += R(O[0])
                if "dpp" in self.mods or "row_" in self.mods or "quad_perm" in self.mods or op.endswith("_dpp"):
                    self.flags.add("dpp")
                    rd += R(O[0])
                if "sdwa" in op or "dst_sel" in self.mods:
                    rd += R(O[0])
                if "op_sel" in self.mods and base in ("v_cvt_pk_bf16_f32",):
                    pass
        elif op.startswith("buffer_") or op.startswith("global_") or op.startswith("flat_"):
            self.kind = "vmem"
            is_store = "_store" in op
            is_atomic = "_atomic" in op
            lds = re.search(r"\blds\b", self.mods) is not None or "_lds_" in op
            if is_store:
                rd = sum((R(x) for x in O), [])
                self.flags.add("store")
                if "x4" in op or "x3" in op:
                    self.flags.add("widestore")
            elif lds:
                rd = sum((R(x) for x in O), []) + [M0]
                self.flags.add("ldsdma")
            elif is_atomic:
                rd = sum((R(x) for x in O), [])
                if "glc" in self.mods or "sc0" in self.mods:
                    wr = R(O[0])
            else:
                wr = R(O[0])
                rd = sum((R(x) for x in O[1:]), [])
        elif op.startswith("ds_"):
            self.kind = "ds"
            if op.startswith("ds_read") or op.startswith("ds_bpermute") or op.startswith("ds_permute") or op.startswith("ds_swizzle"):
                wr = R(O[0])
                rd = sum((R(x) for x in O[1:]), [])
            else:
                rd = sum((R(x) for x in O), [])
                self.flags.add("store")
        elif op.startswith("s_"):
            if op.startswith("s_load") or op.startswith("s_buffer_load"):
                self.kind = "smem"
                wr = R(O[0])
                rd = sum((R(x) for x in O[1:]), [])
            elif op in ("s_waitcnt", "s_barrier", "s_nop", "s_endpgm", "s_setprio", "s_sleep") or op.startswith("s_branch") or op.startswith("s_cbranch"):
                self.kind = "sctl"
                if op == "s_cbranch_vccnz" or op == "s_cbranch_vccz":
                    rd = list(VCC)
                if op in ("s_cbranch_execz", "s_cbranch_execnz"):
                    rd = list(EXEC)
            else:
                self.kind = "salu"
                if op.startswith("s_cmp") or op.startswith("s_bitcmp"):
                    rd = sum((R(x) for x in O), [])
                else:
                    wr = R(O[0])
                    rd = sum((R(x) for x in O[1:]), [])
                    if "saveexec" in op:
                        wr = wr + list(EXEC)
                        rd = rd + list(EXEC)
        else:
            raise ValueError("unknown op " + op)
        self.wr = wr
        self.rd = rd

    def states(self):
        if self.op == "s_nop":
            return int(self.opnds[0], 0) + 1
        return 1

    def __str__(self):
        t = "    " + self.op
        if self.opnds:
            t += " " + ", ".join(self.opnds)
        if self.mods:
            t += " " + self.mods
        if self.comment:
            t += "    ; " + self.comment
        return t


class Label:
    def __init__(self, name):
        self.name = name

    def __str__(self):
        return self.name + ":"


class Raw:
    def __init__(self, text):
        self.text = text

    def __str__(self):
        return self.text


def _ov(a, b):
    if not a or not b:
        return False
    return not set(a).isdisjoint(b)


def _vg(regs):
    return [r for r in regs if r < 1000]


def _sg(regs):
    return [r for r in regs if r >= 1000]


def required_states(p, c):
    need = 0
    pk, ck = p.kind, c.kind
    p_valu = pk in ("valu", "trans")
    c_valu = ck in ("valu", "trans")
    pwv, pws = _vg(p.wr), _sg(p.wr)
    crv, crs = _vg(c.rd), _sg(c.rd)
    cwv = _vg(c.wr)
    if p_valu and ck == "mfma" and _ov(pwv, crv):
        need = max(need, 2)
    if pk == "mfma":
        passes, cls, dsz = MFMA_INFO[p.op]
        D = p.wr
        idx = {2: 0, 4: 1, 8: 2, 16: 3}[passes]
        if ck == "mfma":
            cA = regs_of(c.opnds[1]) + regs_of(c.opnds[2])
            cC = regs_of(c.opnds[3])
            cpasses, ccls, _ = MFMA_INFO[c.op]
            if _ov(D, cC):
                if cC == D and c.op == p.op:
                    need = max(need, 2 if passes == 2 else 0)
                else:
                    if cls == "xdl":
                        need = max(need, (4, 6, 10, 18)[idx] if ccls == "xdl" else (3, 6, 10, 18)[idx])
                    else:
                        need = max(need, (2, 4, 8, 16)[idx] if ccls == "sgemm" else 0)
            if _ov(D, cA):
                need = max(need, (5, 8, 12, 20)[idx] if cls == "xdl" else (4, 6, 10, 18)[idx])
            if _ov(D, c.wr) and not _ov(D, cC):
                need = max(need, (5, 8, 12, 20)[idx] if cls == "xdl" else (4, 6, 10, 18)[idx])
        elif c_valu or ck in ("vmem", "ds"):
            if _ov(D, crv) or _ov(D, cwv):
                need = max(need, (5, 8, 12, 20)[idx] if cls == "xdl" else (4, 6, 10, 18)[idx])
        if cls == "xdl" and c_valu:
            pC = regs_of(p.opnds[3])
            if _ov(pC, cwv):
                need = max(need, (1, 3, 7, 15)[idx])
    if pk == "trans" and ck == "valu" and (_ov(pwv, crv) or _ov(pwv, cwv)):
        need = max(need, 1)
    if p_valu:
        if pws:
            if c_valu and _ov(pws, crs):
                need = max(need, 4 if "readlane" in c.flags else 2)
            if ck == "vmem" and _ov(pws, crs):
                need = max(need, 5)
            if ck == "sctl" and _ov(pws, crs):
                need = max(need, 5)
            if ck in ("salu", "smem") and _ov(pws, crs):
                need = max(need, 2)
        if "readlane" in c.flags and _ov(pwv, crv):
            need = max(need, 1)
        if ("dpp" in c.flags or "permlane" in c.flags) and _ov(pwv, crv):
            need = max(need, 2)
        if _ov(pws, EXEC) and "dpp" in c.flags:
            need = max(need, 5)
        if _ov(pws, EXEC) and ck == "mfma":
            need = max(need, 4)
    if "widestore" in p.flags:
        data = regs_of(p.opnds[0])
        if _ov(data, cwv):
            need = max(need, 2 if c_valu else 1)
    if pk == "salu" and M0 in p.wr and (M0 in c.rd):
        need = max(need, 1)
    return need


class Kernel:
    def __init__(self, name):
        self.name = name
        self.items = []
        self.max_v = 0
        self.max_s = 0
        self._lab = 0

    def I(self, op, *opnds, mods="", comment=""):
        ins = Ins(op, opnds, mods, comment)
        self.items.append(ins)
        for r in ins.wr + ins.rd:
            if r < 1000:
                self.max_v = max(self.max_v, r + 1)
            elif r < 1102:
                self.max_s = max(self.max_s, r - 1000 + 1)
        return ins

    def L(self, name):
        self.items.append(Label(name))

    def C(self, text):
        self.items.append(Raw("    ; " + text))

    def newlabel(self, base="L"):
        self._lab += 1
        return "%s_%s_%d" % (self.name, base, self._lab)

    def wait(self, vm=None, lgkm=None):
        parts = []
        if vm is not None:
            parts.append("vmcnt(%d)" % vm)
        if lgkm is not None:
            parts.append("lgkmcnt(%d)" % lgkm)
        self.I("s_waitcnt", " ".join(parts))

    def _label_index(self):
        return {it.name: i for i, it in enumerate(self.items) if isinstance(it, Label)}

    def hazard_pass(self):
        items = self.items
        out = []
        branch_src = {}
        for i, it in enumerate(items):
            if isinstance(it, Ins) and (it.op.startswith("s_branch") or it.op.startswith("s_cbranch")):
                branch_src.setdefault(it.opnds[0], []).append(i)

        def lookback(seq, pos, c, dist, depth=0):
            worst = 0
            j = pos
            while j >= 0 and dist < 21:
                it = seq[j]
                if isinstance(it, Label):
                    if depth < 3:
                        for b in branch_src.get(it.name, []):
                            worst = max(worst, lookback(items, b, c, dist, depth + 1))
                    j -= 1
                    continue
                if isinstance(it, Raw):
                    j -= 1
                    continue
                if it.op == "s_endpgm" or it.op == "s_branch":
                    if not (depth > 0 and j == pos):
                        break
                req = required_states(it, c)
                if req > dist:
                    worst = max(worst, req - dist)
                dist += it.states()
                j -= 1
            return worst

        for it in items:
            if isinstance(it, Ins):
                need = lookback(out, len(out) - 1, it, 0)
                if need > 0:
                    nop = Ins("s_nop", [str(need - 1)])
                    out.append(nop)
            out.append(it)
        self.items = out

    def wait_check(self, verbose=True):
        items = self.items
        lab = self._label_index()
        errors = []
        vmq = []
        lgq = []
        i = 0
        taken = {}
        steps = 0
        n = len(items)
        while i < n:
            steps += 1
            if steps > 5_000_000:
                errors.append("wait_check: too many steps")
                break
            it = items[i]
            if not isinstance(it, Ins):
                i += 1
                continue
            if it.op == "s_waitcnt":
                t = it.opnds[0]
                m = re.search(r"vmcnt\((\d+)\)", t)
                if m:
                    k = int(m.group(1))
                    while len(vmq) > k:
                        vmq.pop(0)
                m = re.search(r"lgkmcnt\((\d+)\)", t)
                if m:
                    k = int(m.group(1))
                    if any(e[2] for e in lgq):
                        if k == 0:
                            lgq = []
                        else:
                            pass
                    else:
                        while len(lgq) > k:
                            lgq.pop(0)
                i += 1
                continue
            touched = set(it.rd) | set(it.wr)
            for q, nm in ((vmq, "vmcnt"), (lgq, "lgkmcnt")):
                for e in q:
                    if touched & set(e[0]):
                        errors.append("%s: line %d '%s' touches regs pending from line %d '%s' (%s)" % (
                            self.name, i, str(it).strip(), e[1], str(items[e[1]]).strip(), nm))
            if it.kind == "vmem":
                vmq.append((list(it.wr), i))
                if len(vmq) > 63:
                    errors.append("%s: vmcnt overflow at %d" % (self.name, i))
            elif it.kind == "ds":
                lgq.append((list(it.wr), i, False))
            elif it.kind == "smem":
                lgq.append((list(it.wr), i, True))
            if it.op == "s_endpgm":
                vmq, lgq = [], []
                i += 1
                continue
            if it.op == "s_branch":
                tgt = lab[it.opnds[0]]
                if tgt < i:
                    c = taken.get(i, 0)
                    if c < 1:
                        taken[i] = c + 1
                        i = tgt
                    else:
                        i += 1
                    continue
                i = tgt
                continue
            if it.op.startswith("s_cbranch"):
                tgt = lab[it.opnds[0]]
                if tgt < i:
                    c = taken.get(i, 0)
                    if c < 1:
                        taken[i] = c + 1
                        i = tgt
                        continue
            i += 1
        seen = set()
        uniq = []
        for e in errors:
            if e not in seen:
                seen.add(e)
                uniq.append(e)
        return uniq


    def auto_wait(self):
        out = []
        vmq, lgq = [], []
        for it in self.items:
            if not isinstance(it, Ins):
                out.append(it)
                continue
            if it.op == "s_waitcnt":
                t = it.opnds[0]
                m = re.search(r"vmcnt\((\d+)\)", t)
                if m:
                    k = int(m.group(1))
                    while len(vmq) > k:
                        vmq.pop(0)
                m = re.search(r"lgkmcnt\((\d+)\)", t)
                if m:
                    k = int(m.group(1))
                    if any(e[1] for e in lgq):
                        if k == 0:
                            lgq = []
                    else:
                        while len(lgq) > k:
                            lgq.pop(0)
                out.append(it)
                continue
            touched = set(it.rd) | set(it.wr)
            needv = needl = None
            for j in range(len(vmq) - 1, -1, -1):
                if touched & set(vmq[j][0]):
                    needv = len(vmq) - 1 - j
                    break
            for j in range(len(lgq) - 1, -1, -1):
                if touched & set(lgq[j][0]):
                    needl = len(lgq) - 1 - j
                    break
            if needl is not None and any(e[1] for e in lgq):
                needl = 0
            if needv is not None or needl is not None:
                parts = []
                if needv is not None:
                    needv = min(needv, 63)
                    parts.append("vmcnt(%d)" % needv)
                    while len(vmq) > needv:
                        vmq.pop(0)
                if needl is not None:
                    needl = min(needl, 15)
                    parts.append("lgkmcnt(%d)" % needl)
                    if needl == 0:
                        lgq = []
                    else:
                        while len(lgq) > needl:
                            lgq.pop(0)
                out.append(Ins("s_waitcnt", [" ".join(parts)]))
            if it.kind == "vmem":
                vmq.append((list(it.wr), False))
            elif it.kind == "ds":
                lgq.append((list(it.wr), False))
            elif it.kind == "smem":
                lgq.append((list(it.wr), True))
            out.append(it)
            if it.op == "s_endpgm":
                vmq, lgq = [], []
        self.items = out

    def text(self):
        return "\n".join(str(it) for it in self.items)
```

```python
from asmlib import *
import layout as LY

LOG2E = 1.4426950408889634
QSCALE = (18 ** -0.5) * LOG2E


def f32bits(x):
    import struct
    return struct.unpack("<I", struct.pack("<f", x))[0]


class RA:
    def __init__(self, start, limit=256):
        self.n = start
        self.limit = limit

    def a(self, cnt=1, align=1):
        if cnt >= 4:
            align = max(align, 4)
        elif cnt == 2:
            align = max(align, 2)
        self.n = (self.n + align - 1) // align * align
        r = self.n
        self.n += cnt
        assert self.n <= self.limit, "out of registers"
        return r


S_X, S_W, S_WS = 12, 16, 20
S_WAVE = 24
S_XK, S_WKOFF = 25, 26
S_M0X, S_M0W = 27, 28
S_MT, S_NT = 29, 30
S_T0, S_T1, S_T2, S_T3 = 31, 32, 33, 34
S_SAVE = 36
S_H0 = 38
S_S0 = 39
S_C0, S_C1 = 40, 41

XBUF = 16384
WBUF = 18432
WBASE = 32768
LDS_K1 = WBASE + 2 * WBUF


def prologue_ptrs(k, slots):
    for sp, off in slots:
        k.I("s_load_dwordx2", sr(sp, 2), "s[0:1]", off)


def make_srd(k, sd, sp, nbytes):
    k.I("s_mov_b32", s(sd), s(sp))
    k.I("s_mov_b32", s(sd + 1), s(sp + 1))
    k.I("s_mov_b32", s(sd + 2), nbytes)
    k.I("s_mov_b32", s(sd + 3), "0x00020000")


def gemm_mainloop(k, R, orient, nkt, xrow_bytes, wrow_bytes, vt):
    acc = vt["acc"]
    xa = vt["xa"]
    wa = vt["wa"]
    xd = vt["xd"]
    wd = vt["wd"]
    fx = vt["fx"]
    fw = vt["fw"]
    for i in range(72):
        k.I("v_mov_b32", v(acc + i), 0)

    def issue_dma(buf):
        for j in range(4):
            k.I("s_add_u32", "m0", s(S_M0X), buf * XBUF + j * 1024)
            k.I("buffer_load_dwordx4", v(xd + j), sr(S_X, 4), s(S_XK), mods="offen lds")
        for i in range(4):
            k.I("s_add_u32", "m0", s(S_M0W), buf * WBUF + i * 4096)
            k.I("buffer_load_dwordx4", v(wd + i), sr(S_W, 4), s(S_WKOFF), mods="offen lds")
        lab = k.newlabel("skipw")
        k.I("s_cmp_ge_u32", s(S_WAVE), 2)
        k.I("s_cbranch_scc1", lab)
        k.I("s_add_u32", "m0", s(S_M0W), buf * WBUF + 4 * 4096)
        k.I("buffer_load_dwordx4", v(wd + 4), sr(S_W, 4), s(S_WKOFF), mods="offen lds")
        k.L(lab)
        k.I("s_add_u32", s(S_XK), s(S_XK), 128)
        k.I("s_add_u32", s(S_WKOFF), s(S_WKOFF), 64 * wrow_bytes)

    def read_frags(set_, buf, ks, t_list, with_x):
        if with_x:
            for st in range(2):
                for h in range(2):
                    k.I("ds_read_b64", vr(fx + set_ * 8 + st * 4 + h * 2, 2), v(xa + ks * 2 + h),
                        mods="offset:%d" % (buf * XBUF + st * 2048))
        for t in t_list:
            for h in range(2):
                k.I("ds_read_b64_tr_b16", vr(fw + set_ * 36 + t * 4 + h * 2, 2), v(wa),
                    mods="offset:%d" % (buf * WBUF + ks * 9216 + h * 4608 + t * 32))

    def mfmas(set_, t):
        W = vr(fw + set_ * 36 + t * 4, 4)
        for st in range(2):
            X = vr(fx + set_ * 8 + st * 4, 4)
            A = vr(acc + (st * 9 + t) * 4, 4)
            if orient == "NS":
                k.I("v_mfma_f32_16x16x32_bf16", A, W, X, A)
            else:
                k.I("v_mfma_f32_16x16x32_bf16", A, X, W, A)

    issue_dma(0)
    for kt in range(nkt):
        buf = kt & 1
        k.wait(vm=0)
        k.I("s_barrier")
        if kt + 1 < nkt:
            issue_dma(buf ^ 1)
        read_frags(0, buf, 0, range(9), True)
        for t in range(9):
            read_frags(1, buf, 1, [t], t == 0)
            mfmas(0, t)
        for t in range(9):
            mfmas(1, t)
    return acc


def role_gemm1(k):
    R = RA(1)
    vt = {}
    k.C("---- role: QKV GEMM ----")
    k.I("s_and_b32", s(S_MT), "s2", 15)
    k.I("s_lshr_b32", s(S_NT), "s2", 4)
    vl = R.a(); vi = R.a(); vg = R.a(); t0 = R.a(); t1 = R.a(); t2 = R.a()
    k.I("v_and_b32", v(vl), 63, "v0")
    k.I("v_and_b32", v(vi), 15, "v0")
    k.I("v_lshrrev_b32", v(vg), 4, v(vl))
    k.I("v_lshrrev_b32", v(t0), 6, "v0")
    k.I("v_readfirstlane_b32", s(S_WAVE), v(t0))
    k.I("s_lshl_b32", s(S_T0), s(S_MT), 7)
    k.I("s_mov_b32", s(S_S0), s(S_T0))
    k.I("s_lshl_b32", s(S_T1), s(S_WAVE), 5)
    k.I("s_add_u32", s(S_T0), s(S_T0), s(S_T1))
    k.I("s_mul_i32", s(S_XK), s(S_T0), 1152)
    k.I("s_mul_i32", s(S_WKOFF), s(S_NT), 288)
    k.I("s_lshl_b32", s(S_M0X), s(S_WAVE), 12)
    k.I("s_lshl_b32", s(S_M0W), s(S_WAVE), 10)
    k.I("s_add_u32", s(S_M0W), s(S_M0W), WBASE)
    xd = R.a(4, 4); vt["xd"] = xd
    k.I("v_lshrrev_b32", v(t0), 3, v(vl))
    k.I("s_mov_b32", s(S_T2), 1152)
    k.I("v_mul_lo_u32", v(t0), v(t0), s(S_T2))
    k.I("v_and_b32", v(t1), 7, v(vl))
    k.I("v_xor_b32", v(t1), v(t1), v(vg))
    k.I("v_lshl_add_u32", v(xd), v(t1), 4, v(t0))
    k.I("v_xor_b32", v(t2), 64, v(xd))
    k.I("v_add_u32", v(xd + 1), 9216, v(t2))
    k.I("v_add_u32", v(xd + 2), 2 * 9216, v(xd))
    k.I("v_add_u32", v(xd + 3), 3 * 9216, v(t2))
    wd = R.a(5); vt["wd"] = wd
    k.I("s_mov_b32", s(S_T3), 3456)
    k.I("s_movk_i32", s(S_T2), 3641)
    for i in range(5):
        k.I("v_add_u32", v(t0), 256 * i, "v0")
        k.I("v_mul_lo_u32", v(t1), v(t0), s(S_T2))
        k.I("v_lshrrev_b32", v(t1), 16, v(t1))
        k.I("v_mul_u32_u24", v(t2), 18, v(t1))
        k.I("v_sub_u32", v(t2), v(t0), v(t2))
        k.I("v_mul_lo_u32", v(t1), v(t1), s(S_T3))
        k.I("v_lshl_add_u32", v(wd + i), v(t2), 4, v(t1))
    xa = R.a(4); vt["xa"] = xa
    k.I("v_lshlrev_b32", v(t0), 5, s(S_WAVE))
    k.I("v_add_u32", v(t0), v(t0), v(vi))
    k.I("v_lshlrev_b32", v(t0), 7, v(t0))
    k.I("v_and_b32", v(t1), 1, v(vg))
    k.I("v_lshl_add_u32", v(t0), v(t1), 3, v(t0))
    k.I("v_lshrrev_b32", v(t1), 1, v(vg))
    k.I("v_lshrrev_b32", v(t2), 1, v(vi))
    for ks in range(2):
        for h in range(2):
            tt = v(xa + ks * 2 + h)
            k.I("v_add_u32", tt, 4 * ks + 2 * h, v(t1))
            k.I("v_xor_b32", tt, tt, v(t2))
            k.I("v_lshl_add_u32", tt, tt, 4, v(t0))
    wa = R.a(); vt["wa"] = wa
    k.I("v_lshrrev_b32", v(t0), 2, v(vi))
    k.I("v_lshl_add_u32", v(t0), v(vg), 2, v(t0))
    k.I("v_mul_u32_u24", v(t0), 288, v(t0))
    k.I("v_and_b32", v(t1), 3, v(vi))
    k.I("v_lshl_add_u32", v(t0), v(t1), 3, v(t0))
    k.I("v_add_u32", v(wa), WBASE, v(t0))
    vt["acc"] = R.a(72, 4)
    vt["fx"] = R.a(16, 4)
    vt["fw"] = R.a(72, 4)
    acc = vt["acc"]
    tmp = vt["fw"]

    lab_v = k.newlabel("vpath")
    lab_end = k.newlabel("gend")
    k.I("s_cmp_ge_u32", s(S_NT), 8)
    k.I("s_cbranch_scc1", lab_v)
    gemm_mainloop(k, R, "NS", 9, 1152, 3456, vt)
    k.I("s_barrier")
    k.I("s_cmp_lt_u32", s(S_NT), 4)
    k.I("s_cselect_b32", s(S_C0), f32bits(QSCALE), f32bits(1.0))
    k.I("s_cselect_b32", s(S_C1), 0, "0x3F803F80")
    rb = t0
    k.I("v_lshlrev_b32", v(rb), 5, s(S_WAVE))
    k.I("v_add_u32", v(rb), v(rb), v(vi))
    k.I("v_mul_u32_u24", v(rb), 400, v(rb))
    for t in range(9):
        for j in range(2):
            nreg = t1
            k.I("v_lshlrev_b32", v(nreg), 2, v(vg))
            k.I("v_add_u32", v(nreg), 16 * t + 2 * j, v(nreg))
            k.I("v_mul_u32_u24", v(t2), 57, v(nreg))
            k.I("v_lshrrev_b32", v(t2), 10, v(t2))
            k.I("v_mul_u32_u24", v(t2), 12, v(t2))
            k.I("v_lshl_add_u32", v(t2), v(nreg), 1, v(t2))
            k.I("v_add_u32", v(t2), v(t2), v(rb))
            for st in range(2):
                a = acc + (st * 9 + t) * 4 + 2 * j
                d = tmp + ((t * 2 + j) * 2 + st) % 32
                k.I("v_mul_f32", v(a), s(S_C0), v(a))
                k.I("v_mul_f32", v(a + 1), s(S_C0), v(a + 1))
                k.I("v_cvt_pk_bf16_f32", v(d), v(a), v(a + 1))
                k.I("ds_write_b32", v(t2), v(d), mods="offset:%d" % (st * 6400))
    k.I("v_and_b32", v(t1), 127, "v0")
    k.I("v_mul_u32_u24", v(t1), 400, v(t1))
    k.I("v_lshrrev_b32", v(t2), 7, "v0")
    k.I("v_mul_u32_u24", v(t2), 48, v(t2))
    k.I("v_add_u32", v(t1), v(t1), v(t2))
    k.I("v_mov_b32", v(tmp), s(S_C1))
    k.I("v_mov_b32", v(tmp + 1), 0)
    for i in range(4):
        k.I("ds_write_b32", v(t1), v(tmp), mods="offset:%d" % (36 + 96 * i))
        k.I("ds_write_b32", v(t1), v(tmp + 1), mods="offset:%d" % (40 + 96 * i))
        k.I("ds_write_b32", v(t1), v(tmp + 1), mods="offset:%d" % (44 + 96 * i))
    k.wait(lgkm=0)
    k.I("s_barrier")
    k.I("s_and_b32", s(S_H0), s(S_NT), 3)
    k.I("s_lshl_b32", s(S_H0), s(S_H0), 3)
    lab_k = k.newlabel("kpath")
    k.I("s_cmp_ge_u32", s(S_NT), 4)
    k.I("s_cbranch_scc1", lab_k)
    k.I("v_lshrrev_b32", v(t0), 2, "v0")
    k.I("v_and_b32", v(t1), 3, "v0")
    k.I("v_mul_u32_u24", v(t2), 400, v(t0))
    k.I("v_lshl_add_u32", v(t2), v(t1), 4, v(t2))
    k.I("v_lshlrev_b32", v(t0), 6, v(t0))
    k.I("v_lshl_add_u32", v(t0), v(t1), 4, v(t0))
    k.I("v_cmp_eq_u32", "vcc", 3, v(t1))
    k.I("s_lshl_b32", s(S_T0), s(S_H0), 11)
    k.I("s_add_u32", s(S_T0), s(S_T0), s(S_S0))
    k.I("s_lshl_b32", s(S_T0), s(S_T0), 6)
    k.I("s_add_u32", s(S_T0), s(S_T0), LY.QP_OFF)
    for it in range(16):
        hl, half = it >> 1, it & 1
        d = tmp + (it % 4) * 4
        k.I("ds_read_b128", vr(d, 4), v(t2), mods="offset:%d" % (half * 64 * 400 + hl * 48))
        for r in range(4):
            k.I("v_cndmask_b32", v(d + r), v(d + r), 0, "vcc") if False else k.I("v_cndmask_b32", v(d + r), v(d + r), "0", "vcc")
        k.I("s_add_u32", s(S_T1), s(S_T0), hl * 2048 * 64 + half * 64 * 64)
        k.I("buffer_store_dwordx4", vr(d, 4), v(t0), sr(S_WS, 4), s(S_T1), mods="offen")
    k.I("s_branch", lab_end)
    k.L(lab_k)
    k.I("s_lshr_b32", s(S_T0), s(S_S0), 8)
    k.I("s_lshl_b32", s(S_T1), s(S_H0), 3)
    k.I("s_add_u32", s(S_T0), s(S_T0), s(S_T1))
    k.I("s_mul_i32", s(S_T0), s(S_T0), LY.KVREC)
    k.I("s_and_b32", s(S_T1), s(S_S0), 255)
    k.I("s_mul_i32", s(S_T1), s(S_T1), 48)
    k.I("s_add_u32", s(S_T0), s(S_T0), s(S_T1))
    k.I("s_add_u32", s(S_T0), s(S_T0), LY.KV_OFF)
    la = [R.a() for _ in range(3)]
    ga = [R.a() for _ in range(3)]
    for j in range(3):
        k.I("v_add_u32", v(t0), 256 * j, "v0")
        k.I("v_cmp_le_u32", "vcc", 384, v(t0))
        k.I("v_cndmask_b32", v(t1), 0, 1, "vcc")
        k.I("v_mul_u32_u24", v(t2), 384, v(t1))
        k.I("v_sub_u32", v(t0), v(t0), v(t2))
        k.I("v_mul_u32_u24", v(t2), 171, v(t0))
        k.I("v_lshrrev_b32", v(t2), 9, v(t2))
        k.I("v_mul_u32_u24", v(la[j]), 400, v(t2))
        k.I("v_mul_u32_u24", v(t2), 3, v(t2))
        k.I("v_sub_u32", v(t2), v(t0), v(t2))
        k.I("v_lshl_add_u32", v(la[j]), v(t2), 4, v(la[j]))
        k.I("v_mul_u32_u24", v(t2), 48, v(t1))
        k.I("v_add_u32", v(la[j]), v(la[j]), v(t2))
        k.I("s_mov_b32", s(S_T1), 8 * LY.KVREC)
        k.I("v_mul_lo_u32", v(ga[j]), v(t1), s(S_T1))
        k.I("v_lshl_add_u32", v(ga[j]), v(t0), 4, v(ga[j]))
    for hp2 in range(4):
        for j in range(3):
            d = tmp + ((hp2 * 3 + j) % 4) * 4
            k.I("ds_read_b128", vr(d, 4), v(la[j]), mods="offset:%d" % (hp2 * 96))
            k.I("s_add_u32", s(S_T1), s(S_T0), hp2 * 2 * 8 * LY.KVREC)
            k.I("buffer_store_dwordx4", vr(d, 4), v(ga[j]), sr(S_WS, 4), s(S_T1), mods="offen")
    k.I("s_branch", lab_end)

    k.L(lab_v)
    gemm_mainloop(k, R, "SN", 9, 1152, 3456, vt)
    k.I("s_barrier")
    VP = 272
    k.I("v_and_b32", v(t0), 1, v(vg))
    k.I("v_lshlrev_b32", v(t0), 3, v(t0))
    k.I("v_and_b32", v(t1), 2, v(vg))
    k.I("v_lshl_add_u32", v(t0), v(t1), 1, v(t0))
    k.I("v_lshl_add_u32", v(t0), s(S_WAVE), 5, v(t0))
    k.I("v_lshlrev_b32", v(t0), 1, v(t0))
    k.I("v_mul_u32_u24", v(t1), VP, v(vi))
    k.I("v_add_u32", v(t0), v(t0), v(t1))
    for st in range(2):
        for t in range(9):
            a = acc + (st * 9 + t) * 4
            d = tmp + ((st * 9 + t) % 16) * 2
            k.I("v_cvt_pk_bf16_f32", v(d), v(a), v(a + 1))
            k.I("v_cvt_pk_bf16_f32", v(d + 1), v(a + 2), v(a + 3))
            k.I("ds_write_b64", v(t0), vr(d, 2), mods="offset:%d" % (t * 16 * VP + st * 32))
    k.wait(lgkm=0)
    k.I("s_barrier")
    k.I("s_and_b32", s(S_H0), s(S_NT), 3)
    k.I("s_lshl_b32", s(S_H0), s(S_H0), 3)
    k.I("s_lshr_b32", s(S_T0), s(S_S0), 8)
    k.I("s_lshl_b32", s(S_T1), s(S_H0), 3)
    k.I("s_add_u32", s(S_T0), s(S_T0), s(S_T1))
    k.I("s_mul_i32", s(S_T0), s(S_T0), LY.KVREC)
    k.I("s_and_b32", s(S_T1), s(S_S0), 255)
    k.I("s_lshl_b32", s(S_T1), s(S_T1), 1)
    k.I("s_add_u32", s(S_T0), s(S_T0), s(S_T1))
    k.I("s_add_u32", s(S_T0), s(S_T0), LY.KV_OFF + LY.KPART)
    k.I("v_lshrrev_b32", v(t0), 4, "v0")
    k.I("v_and_b32", v(t1), 15, "v0")
    k.I("v_lshlrev_b32", v(t1), 4, v(t1))
    k.I("s_mov_b32", s(S_T2), 8 * LY.KVREC)
    for it in range(9):
        d = tmp + (it % 4) * 4
        la_, ga_ = tmp + 16, tmp + 17
        k.I("v_add_u32", v(t2), 16 * it, v(t0))
        k.I("v_mul_u32_u24", v(la_), VP, v(t2))
        k.I("v_add_u32", v(la_), v(la_), v(t1))
        k.I("ds_read_b128", vr(d, 4), v(la_))
        k.I("v_mul_u32_u24", v(ga_), 57, v(t2))
        k.I("v_lshrrev_b32", v(ga_), 10, v(ga_))
        k.I("v_mul_u32_u24", v(la_), 18, v(ga_))
        k.I("v_sub_u32", v(t2), v(t2), v(la_))
        k.I("v_mul_lo_u32", v(ga_), v(ga_), s(S_T2))
        k.I("v_mul_u32_u24", v(t2), LY.VPITCH, v(t2))
        k.I("v_add_u32", v(ga_), v(ga_), v(t2))
        k.I("v_add_u32", v(ga_), v(ga_), v(t1))
        k.I("buffer_store_dwordx4", vr(d, 4), v(ga_), sr(S_WS, 4), s(S_T0), mods="offen")
    k.I("v_cmp_gt_u32", "vcc", 128, "v0")
    k.I("s_and_saveexec_b64", sr(S_SAVE, 2), "vcc")
    k.I("v_mul_lo_u32", v(t2), v(t0), s(S_T2))
    k.I("v_add_u32", v(t2), 18 * LY.VPITCH, v(t2))
    k.I("v_add_u32", v(t2), v(t2), v(t1))
    for r in range(4):
        k.I("v_mov_b32", v(tmp + r), "0x3F803F80")
    k.I("buffer_store_dwordx4", vr(tmp, 4), v(t2), sr(S_WS, 4), s(S_T0), mods="offen")
    k.I("s_mov_b64", "exec", sr(S_SAVE, 2))
    k.L(lab_end)
    k.wait(vm=0)
    k.I("s_endpgm")


INV2PI = 0.15915494309189535


def bf16_round_f32(k, dst, src, tmp):
    k.I("v_cvt_pk_bf16_f32", v(tmp), v(src), v(src))
    k.I("v_lshlrev_b32", v(dst), 16, v(tmp))


def role_gate(k):
    R = RA(1)
    k.C("---- role: gate ----")
    vl = R.a(); t0 = R.a(); t1 = R.a(); t2 = R.a()
    gw = R.a(9); xv = R.a(9); accv = R.a(); res = R.a()
    k.I("v_and_b32", v(vl), 63, "v0")
    k.I("v_lshrrev_b32", v(t0), 6, "v0")
    k.I("v_readfirstlane_b32", s(S_WAVE), v(t0))
    k.I("v_lshlrev_b32", v(t0), 1, v(vl))
    for j in range(9):
        k.I("buffer_load_ushort", v(gw + j), v(t0), sr(S_W, 4), 0, mods="offen offset:%d" % (128 * j))
    k.I("s_sub_u32", s(S_T0), "s2", 1056)
    k.I("s_lshl_b32", s(S_T0), s(S_T0), 5)
    k.I("s_lshl_b32", s(S_T1), s(S_WAVE), 3)
    k.I("s_add_u32", s(S_T0), s(S_T0), s(S_T1))
    k.I("s_mul_i32", s(S_T2), s(S_T0), 1152)
    k.I("v_mov_b32", v(res), 0)
    for j in range(9):
        k.I("v_lshlrev_b32", v(gw + j), 16, v(gw + j))
    for r in range(8):
        for j in range(9):
            k.I("buffer_load_ushort", v(xv + j), v(t0), sr(S_X, 4), s(S_T2), mods="offen offset:%d" % (128 * j))
        k.I("s_add_u32", s(S_T2), s(S_T2), 1152)
        k.I("v_mov_b32", v(accv), 0)
        for j in range(9):
            k.I("v_lshlrev_b32", v(t1), 16, v(xv + j))
            k.I("v_mul_f32", v(t1), v(t1), v(gw + j))
            k.I("v_cvt_pk_bf16_f32", v(t1), v(t1), v(t1))
            k.I("v_lshlrev_b32", v(t1), 16, v(t1))
            k.I("v_add_f32", v(accv), v(accv), v(t1))
        k.I("v_add_f32", v(accv), v(accv), v(accv), mods="quad_perm:[1,0,3,2] row_mask:0xf bank_mask:0xf")
        k.I("v_add_f32", v(accv), v(accv), v(accv), mods="quad_perm:[2,3,0,1] row_mask:0xf bank_mask:0xf")
        k.I("v_add_f32", v(accv), v(accv), v(accv), mods="row_half_mirror row_mask:0xf bank_mask:0xf")
        k.I("v_add_f32", v(accv), v(accv), v(accv), mods="row_mirror row_mask:0xf bank_mask:0xf")
        k.I("v_readlane_b32", s(S_T1), v(accv), 0)
        k.I("v_readlane_b32", s(S_T3), v(accv), 16)
        k.I("v_readlane_b32", s(S_C0), v(accv), 32)
        k.I("v_readlane_b32", s(S_C1), v(accv), 48)
        k.I("v_mov_b32", v(t1), s(S_T1))
        k.I("v_add_f32", v(t1), s(S_T3), v(t1))
        k.I("v_add_f32", v(t1), s(S_C0), v(t1))
        k.I("v_add_f32", v(t1), s(S_C1), v(t1))
        k.I("v_cmp_eq_u32", "vcc", r, v(vl))
        k.I("v_cndmask_b32", v(res), v(res), v(t1), "vcc")
    bf16_round_f32(k, res, res, t1)
    k.I("v_mul_f32", v(t1), f32bits(-LOG2E), v(res))
    k.I("v_exp_f32", v(t1), v(t1))
    k.I("v_add_f32", v(t1), 1.0, v(t1))
    k.I("v_rcp_f32", v(t1), v(t1))
    bf16_round_f32(k, t1, t1, t2)
    k.I("v_cmp_gt_u32", "vcc", 8, v(vl))
    k.I("s_and_saveexec_b64", sr(S_SAVE, 2), "vcc")
    k.I("s_lshl_b32", s(S_T0), s(S_T0), 2)
    k.I("s_add_u32", s(S_T0), s(S_T0), LY.G_OFF)
    k.I("v_lshlrev_b32", v(t2), 2, v(vl))
    k.I("buffer_store_dword", v(t1), v(t2), sr(S_WS, 4), s(S_T0), mods="offen")
    k.I("s_mov_b64", "exec", sr(S_SAVE, 2))
    k.I("s_endpgm")


def role_xt(k):
    R = RA(1)
    k.C("---- role: x transpose ----")
    P = 144
    vl = R.a(); vi = R.a(); vg = R.a(); t0 = R.a(); t1 = R.a(); t2 = R.a()
    d0 = R.a(8, 4)
    k.I("v_and_b32", v(vl), 63, "v0")
    k.I("v_and_b32", v(vi), 15, "v0")
    k.I("v_lshrrev_b32", v(vg), 4, v(vl))
    k.I("v_lshrrev_b32", v(t0), 6, "v0")
    k.I("v_readfirstlane_b32", s(S_WAVE), v(t0))
    k.I("s_sub_u32", s(S_T0), "s2", 768)
    k.I("s_and_b32", s(S_MT), s(S_T0), 31)
    k.I("s_lshr_b32", s(S_NT), s(S_T0), 5)
    k.I("v_lshrrev_b32", v(t0), 3, "v0")
    k.I("v_and_b32", v(t1), 7, "v0")
    k.I("v_mul_u32_u24", v(t2), 1152, v(t0))
    k.I("v_lshl_add_u32", v(t2), v(t1), 4, v(t2))
    k.I("s_mul_i32", s(S_T1), s(S_MT), 64 * 1152)
    k.I("s_lshl_b32", s(S_T2), s(S_NT), 7)
    k.I("s_add_u32", s(S_T1), s(S_T1), s(S_T2))
    k.I("s_add_u32", s(S_T2), s(S_T1), 32 * 1152)
    k.I("buffer_load_dwordx4", vr(d0, 4), v(t2), sr(S_X, 4), s(S_T1), mods="offen")
    k.I("buffer_load_dwordx4", vr(d0 + 4, 4), v(t2), sr(S_X, 4), s(S_T2), mods="offen")
    k.I("v_mul_u32_u24", v(t0), P, v(t0))
    k.I("v_lshl_add_u32", v(t0), v(t1), 4, v(t0))
    k.I("ds_write_b128", v(t0), vr(d0, 4))
    k.I("ds_write_b128", v(t0), vr(d0 + 4, 4), mods="offset:%d" % (32 * P))
    k.wait(lgkm=0)
    k.I("s_barrier")
    k.I("v_lshrrev_b32", v(t0), 2, v(vi))
    k.I("v_lshl_add_u32", v(t0), v(vg), 3, v(t0))
    k.I("v_mul_u32_u24", v(t0), P, v(t0))
    k.I("v_and_b32", v(t1), 3, v(vi))
    k.I("v_lshl_add_u32", v(t0), v(t1), 3, v(t0))
    k.I("s_lshl_b32", s(S_T1), s(S_WAVE), 5)
    k.I("v_add_u32", v(t0), s(S_T1), v(t0))
    for half in range(2):
        for q in range(2):
            k.I("ds_read_b64_tr_b16", vr(d0 + half * 4 + q * 2, 2), v(t0), mods="offset:%d" % ((32 * half + 4 * q) * P))
    k.I("v_lshlrev_b32", v(t1), 12, v(vi))
    k.I("v_lshl_add_u32", v(t1), v(vg), 4, v(t1))
    k.I("s_lshl_b32", s(S_T1), s(S_NT), 6)
    k.I("s_lshl_b32", s(S_T2), s(S_WAVE), 4)
    k.I("s_add_u32", s(S_T1), s(S_T1), s(S_T2))
    k.I("s_lshl_b32", s(S_T1), s(S_T1), 12)
    k.I("s_lshl_b32", s(S_T2), s(S_MT), 7)
    k.I("s_add_u32", s(S_T1), s(S_T1), s(S_T2))
    k.I("s_add_u32", s(S_T1), s(S_T1), LY.XT_OFF)
    k.I("buffer_store_dwordx4", vr(d0, 4), v(t1), sr(S_WS, 4), s(S_T1), mods="offen")
    k.I("buffer_store_dwordx4", vr(d0 + 4, 4), v(t1), sr(S_WS, 4), s(S_T1), mods="offen offset:64")
    k.I("s_endpgm")


def role_kgen(k):
    R = RA(1)
    k.C("---- role: S4D kernel table generation ----")
    vl = R.a(); vi = R.a(); vg = R.a()
    t = [R.a() for _ in range(12)]
    prm = R.a(4, 4)
    pc = R.a(); pf = R.a()
    acc = R.a(4, 4)
    Ah = R.a(4, 4); Al = R.a(4, 4); Bh = R.a(4, 4); Bl = R.a(4, 4)
    k.I("v_and_b32", v(vl), 63, "v0")
    k.I("v_and_b32", v(vi), 15, "v0")
    k.I("v_lshrrev_b32", v(vg), 4, v(vl))
    k.I("v_lshrrev_b32", v(t[0]), 6, "v0")
    k.I("v_readfirstlane_b32", s(S_WAVE), v(t[0]))
    k.I("s_sub_u32", s(S_MT), "s2", 192)
    k.I("v_and_b32", v(t[0]), 127, "v0")
    k.I("v_lshlrev_b32", v(t[0]), 1, v(t[0]))
    k.I("s_lshl_b32", s(S_T0), s(S_MT), 8)
    for j, srd in enumerate((44, 48, 52, 56)):
        k.I("buffer_load_ushort", v(t[1 + j]), v(t[0]), sr(srd, 4), s(S_T0), mods="offen")
    k.I("s_lshl_b32", s(S_T1), s(S_MT), 1)
    k.I("v_mov_b32", v(t[5]), 0)
    k.I("buffer_load_ushort", v(t[5]), v(t[5]), sr(60, 4), s(S_T1), mods="offen")
    for j in range(1, 6):
        k.I("v_lshlrev_b32", v(t[j]), 16, v(t[j]))
    k.I("v_mul_f32", v(t[5]), f32bits(LOG2E), v(t[5]))
    k.I("v_exp_f32", v(t[5]), v(t[5]))
    bf16_round_f32(k, t[5], t[5], t[6])
    k.I("v_mul_f32", v(t[1]), f32bits(LOG2E), v(t[1]))
    k.I("v_exp_f32", v(t[1]), v(t[1]))
    bf16_round_f32(k, t[1], t[1], t[6])
    k.I("v_mul_f32", v(prm), v(t[1]), v(t[5]))
    k.I("v_mul_f32", v(prm), f32bits(-LOG2E), v(prm))
    k.I("v_mul_f32", v(prm + 1), v(t[2]), v(t[5]))
    k.I("v_mul_f32", v(prm + 1), f32bits(INV2PI), v(prm + 1))
    k.I("v_mul_f32", v(prm + 2), v(t[3]), v(t[5]))
    k.I("v_add_f32", v(prm + 2), v(prm + 2), v(prm + 2))
    k.I("v_mul_f32", v(prm + 3), v(t[4]), v(t[5]))
    k.I("v_add_f32", v(prm + 3), v(prm + 3), v(prm + 3))
    k.I("v_lshlrev_b32", v(t[0]), 3, v(t[0]))
    k.I("ds_write_b128", v(t[0]), vr(prm, 4))
    k.wait(lgkm=0)
    k.I("s_barrier")
    k.I("s_lshl_b32", s(S_T0), 1, s(S_WAVE))
    k.I("s_lshl_b32", s(S_T1), 128, s(S_WAVE))
    k.I("s_cmp_eq_u32", s(S_WAVE), 0)
    k.I("s_cselect_b32", s(S_T1), 0, s(S_T1))
    k.I("v_mul_lo_u32", v(pf), v(vi), s(S_T0))
    k.I("v_lshlrev_b32", v(pc), 4, v(pf))
    k.I("v_add_u32", v(pc), s(S_T1), v(pc))
    k.I("v_cvt_f32_u32", v(pf), v(pf))
    k.I("v_cvt_f32_u32", v(pc), v(pc))
    for r in range(4):
        k.I("v_mov_b32", v(acc + r), 0)
    pa = R.a()
    k.I("v_lshlrev_b32", v(pa), 6, v(vg))
    P = [R.a(4, 4) for _ in range(4)]

    def cexp(pos, pr, er, ei, tm):
        k.I("v_mul_f32", v(er), v(pr), v(pos))
        k.I("v_exp_f32", v(er), v(er))
        k.I("v_mul_f32", v(tm), v(pr + 1), v(pos))
        k.I("v_fract_f32", v(tm), v(tm))
        k.I("v_sin_f32", v(ei), v(tm))
        k.I("v_cos_f32", v(tm), v(tm))
        k.I("v_mul_f32", v(ei), v(er), v(ei))
        k.I("v_mul_f32", v(er), v(er), v(tm))

    def split(hi, lo, a, b, ta, tb):
        k.I("v_cvt_pk_bf16_f32", v(hi), v(a), v(b))
        k.I("v_lshlrev_b32", v(ta), 16, v(hi))
        k.I("v_and_b32", v(tb), "0xffff0000", v(hi))
        k.I("v_sub_f32", v(ta), v(a), v(ta))
        k.I("v_sub_f32", v(tb), v(b), v(tb))
        k.I("v_cvt_pk_bf16_f32", v(lo), v(ta), v(tb))

    for m in range(8):
        for q in range(4):
            k.I("ds_read_b128", vr(P[q], 4), v(pa), mods="offset:%d" % ((16 * m + q) * 16))
        for q in range(4):
            pr = P[q]
            er, ei, tm, gr, gi = t[0], t[1], t[2], t[3], t[4]
            cexp(pc, pr, er, ei, tm)
            k.I("v_mul_f32", v(gr), v(pr + 2), v(er))
            k.I("v_fma_f32", v(gr), "-" + v(pr + 3), v(ei), v(gr))
            k.I("v_mul_f32", v(gi), v(pr + 2), v(ei))
            k.I("v_fma_f32", v(gi), v(pr + 3), v(er), v(gi))
            k.I("v_sub_f32", v(gi), 0, v(gi))
            split(Ah + q, Al + q, gr, gi, t[5], t[6])
            fr, fi = t[7], t[8]
            cexp(pf, pr, fr, fi, t[9])
            split(Bh + q, Bl + q, fr, fi, t[10], t[11])
        k.I("v_mfma_f32_16x16x32_bf16", vr(acc, 4), vr(Ah, 4), vr(Bh, 4), vr(acc, 4))
        k.I("v_mfma_f32_16x16x32_bf16", vr(acc, 4), vr(Ah, 4), vr(Bl, 4), vr(acc, 4))
        k.I("v_mfma_f32_16x16x32_bf16", vr(acc, 4), vr(Al, 4), vr(Bh, 4), vr(acc, 4))
    k.I("s_lshl_b32", s(S_T0), s(S_WAVE), 7)
    k.I("s_add_u32", s(S_T0), s(S_T0), 128)
    k.I("s_cmp_eq_u32", s(S_WAVE), 0)
    k.I("s_cselect_b32", s(S_T0), 0, s(S_T0))
    k.I("s_mul_i32", s(S_T1), s(S_MT), LY.KT_PITCH)
    k.I("s_add_u32", s(S_T0), s(S_T0), s(S_T1))
    k.I("s_lshl_b32", s(S_T0), s(S_T0), 2)
    k.I("s_add_u32", s(S_T0), s(S_T0), LY.KT_OFF)
    k.I("v_lshlrev_b32", v(t[0]), 8, v(vg))
    k.I("v_lshl_add_u32", v(t[0]), v(vi), 2, v(t[0]))
    k.I("s_cmp_eq_u32", s(S_WAVE), 0)
    k.I("s_cselect_b32", s(S_T2), 4, 2)
    k.I("s_cmp_eq_u32", s(S_WAVE), 3)
    k.I("s_cselect_b32", s(S_T2), 3, s(S_T2))
    k.I("v_cmp_gt_u32", "vcc", s(S_T2), v(vg))
    k.I("s_and_saveexec_b64", sr(S_SAVE, 2), "vcc")
    for r in range(4):
        k.I("buffer_store_dword", v(acc + r), v(t[0]), sr(S_WS, 4), s(S_T0), mods="offen offset:%d" % (64 * r))
    k.I("s_mov_b64", "exec", sr(S_SAVE, 2))
    k.I("s_endpgm")


def build_k1():
    k = Kernel("k1_kernel")
    prologue_ptrs(k, [(4, 0), (6, 8), (8, 104)])
    lab_kgen = k.newlabel("kgen")
    lab_xt = k.newlabel("xt")
    lab_gate = k.newlabel("gate")
    lab_exit = k.newlabel("exit")
    k.wait(lgkm=0)
    make_srd(k, S_X, 4, LY.S * LY.D * 2)
    make_srd(k, S_WS, 8, LY.WS_USED)
    k.I("s_cmp_ge_u32", "s2", 1120)
    k.I("s_cbranch_scc1", lab_exit)
    k.I("s_cmp_ge_u32", "s2", 1056)
    k.I("s_cbranch_scc1", lab_gate)
    k.I("s_cmp_ge_u32", "s2", 768)
    k.I("s_cbranch_scc1", lab_xt)
    k.I("s_cmp_ge_u32", "s2", 192)
    k.I("s_cbranch_scc1", lab_kgen)
    make_srd(k, S_W, 6, 576 * 1728 * 2)
    role_gemm1(k)
    k.L(lab_kgen)
    prologue_ptrs(k, [(44, 32), (48, 40), (52, 48), (56, 56), (60, 64)])
    k.wait(lgkm=0)
    for sd in (44, 48, 52, 56):
        k.I("s_mov_b32", s(sd + 2), 576 * 128 * 2)
        k.I("s_mov_b32", s(sd + 3), "0x00020000")
    k.I("s_mov_b32", s(62), 576 * 2)
    k.I("s_mov_b32", s(63), "0x00020000")
    role_kgen(k)
    k.L(lab_xt)
    role_xt(k)
    k.L(lab_gate)
    prologue_ptrs(k, [(4, 80)])
    k.wait(lgkm=0)
    make_srd(k, S_W, 4, 576 * 2)
    role_gate(k)
    k.L(lab_exit)
    k.I("s_endpgm")
    return k, dict(grid=1120, block=256, lds=LDS_K1)
```

```python
from asmlib import *
import layout as LY
from k1 import RA, f32bits, make_srd, prologue_ptrs

S_WS = 12
S_WAVE = 16
S_HEAD = 17
S_QT = 18
S_T0, S_T1, S_T2, S_T3 = 19, 20, 21, 22
S_BUF = 23
S_KVOFF = 24
S_CNT = 25
S_DELTA = 26
S_SAVE = 28
S_SAVE2 = 30

THR = 8.0
KVB = LY.KVREC


def role_attn(k):
    R = RA(1, 128)
    k.C("---- role: attention ----")
    vl = R.a(); vq = R.a(); vh = R.a()
    t0 = R.a(); t1 = R.a(); t2 = R.a(); t3 = R.a()
    vdma = R.a(); ka = R.a(); va = R.a()
    Q = R.a(8, 4)
    NEG = R.a(16, 4)
    S = R.a(16, 4)
    O = R.a(16, 4)
    KF = [R.a(8, 4), R.a(8, 4)]
    VF = [R.a(8, 4), R.a(8, 4)]
    P = R.a(8, 4)
    mx = R.a(8)
    k.I("v_and_b32", v(vl), 63, "v0")
    k.I("v_and_b32", v(vq), 31, "v0")
    k.I("v_bfe_u32", v(vh), "v0", 5, 1)
    k.I("v_lshrrev_b32", v(t0), 6, "v0")
    k.I("v_readfirstlane_b32", s(S_WAVE), v(t0))
    k.I("s_and_b32", s(S_T0), "s2", 7)
    k.I("s_lshl_b32", s(S_T0), s(S_T0), 2)
    k.I("s_lshr_b32", s(S_T1), "s2", 3)
    k.I("s_and_b32", s(S_T1), s(S_T1), 3)
    k.I("s_add_u32", s(S_HEAD), s(S_T0), s(S_T1))
    k.I("s_lshr_b32", s(S_QT), "s2", 5)
    k.I("v_lshlrev_b32", v(vdma), 4, v(vl))
    k.I("s_lshl_b32", s(S_T0), s(S_WAVE), 10)
    k.I("v_add_u32", v(vdma), s(S_T0), v(vdma))
    k.I("s_mul_i32", s(S_KVOFF), s(S_HEAD), 8 * LY.KVREC)
    k.I("s_add_u32", s(S_KVOFF), s(S_KVOFF), LY.KV_OFF)
    k.I("s_mov_b32", s(S_BUF), s(S_T0))

    def issue_dma():
        for i in range(2):
            k.I("s_add_u32", "m0", s(S_BUF), i * 8192)
            k.I("s_add_u32", s(S_T1), s(S_KVOFF), i * 8192)
            k.I("buffer_load_dwordx4", v(vdma), sr(S_WS, 4), s(S_T1), mods="offen lds")
        lab = k.newlabel("skipd")
        k.I("s_cmp_ge_u32", s(S_WAVE), 6)
        k.I("s_cbranch_scc1", lab)
        k.I("s_add_u32", "m0", s(S_BUF), 2 * 8192)
        k.I("s_add_u32", s(S_T1), s(S_KVOFF), 2 * 8192)
        k.I("buffer_load_dwordx4", v(vdma), sr(S_WS, 4), s(S_T1), mods="offen lds")
        k.L(lab)
        k.I("s_add_u32", s(S_KVOFF), s(S_KVOFF), LY.KVREC)

    issue_dma()
    k.I("s_lshl_b32", s(S_T0), s(S_HEAD), 11)
    k.I("s_lshl_b32", s(S_T1), s(S_QT), 8)
    k.I("s_add_u32", s(S_T0), s(S_T0), s(S_T1))
    k.I("s_lshl_b32", s(S_T1), s(S_WAVE), 5)
    k.I("s_add_u32", s(S_T0), s(S_T0), s(S_T1))
    k.I("s_lshl_b32", s(S_T0), s(S_T0), 6)
    k.I("s_add_u32", s(S_T0), s(S_T0), LY.QP_OFF)
    k.I("v_lshlrev_b32", v(t0), 6, v(vq))
    k.I("v_lshl_add_u32", v(t0), v(vh), 4, v(t0))
    k.I("buffer_load_dwordx4", vr(Q, 4), v(t0), sr(S_WS, 4), s(S_T0), mods="offen")
    k.I("buffer_load_dwordx4", vr(Q + 4, 4), v(t0), sr(S_WS, 4), s(S_T0), mods="offen offset:32")
    k.I("v_mul_u32_u24", v(ka), 48, v(vq))
    k.I("v_lshl_add_u32", v(ka), v(vh), 4, v(ka))
    k.I("v_mul_u32_u24", v(va), LY.VPITCH, v(vq))
    k.I("v_lshl_add_u32", v(va), v(vh), 4, v(va))
    k.I("v_add_u32", v(va), LY.KPART, v(va))
    for i in range(16):
        k.I("v_mov_b32", v(O + i), 0)
    k.wait(vm=0)
    k.I("s_barrier")
    k.I("s_add_u32", s(S_BUF), s(S_BUF), KVB)
    issue_dma()
    k.I("s_mov_b32", s(S_DELTA), KVB)

    def read_kf(dst, blk):
        k.I("ds_read_b128", vr(dst, 4), v(ka), mods="offset:%d" % (blk * 1536))
        k.I("ds_read_b128", vr(dst + 4, 4), v(ka), mods="offset:%d" % (blk * 1536 + 32))

    def read_vf(dst, blk):
        k.I("ds_read_b128", vr(dst, 4), v(va), mods="offset:%d" % (blk * 64))
        k.I("ds_read_b128", vr(dst + 4, 4), v(va), mods="offset:%d" % (blk * 64 + 32))

    def qk(kf, cin):
        k.I("v_mfma_f32_32x32x16_bf16", vr(S, 16), vr(kf, 4), vr(Q, 4), cin)
        k.I("v_mfma_f32_32x32x16_bf16", vr(S, 16), vr(kf + 4, 4), vr(Q + 4, 4), vr(S, 16))

    def maxtree():
        k.I("v_max3_f32", v(mx), v(S), v(S + 1), v(S + 2))
        k.I("v_max3_f32", v(mx + 1), v(S + 3), v(S + 4), v(S + 5))
        k.I("v_max3_f32", v(mx + 2), v(S + 6), v(S + 7), v(S + 8))
        k.I("v_max3_f32", v(mx + 3), v(S + 9), v(S + 10), v(S + 11))
        k.I("v_max3_f32", v(mx + 4), v(S + 12), v(S + 13), v(S + 14))
        k.I("v_max3_f32", v(mx), v(mx), v(mx + 1), v(S + 15))
        k.I("v_max3_f32", v(mx + 2), v(mx + 2), v(mx + 3), v(mx + 4))
        k.I("v_max_f32", v(mx), v(mx), v(mx + 2))

    def both_halves_max():
        k.I("v_mov_b32", v(mx + 1), v(mx))
        k.I("v_permlane32_swap_b32", v(mx), v(mx + 1))
        k.I("v_max_f32", v(mx), v(mx), v(mx + 1))

    read_kf(KF[0], 0)
    qk(KF[0], 0)
    maxtree()
    both_halves_max()
    k.I("v_sub_f32", v(mx), 0, v(mx))
    for i in range(16):
        k.I("v_mov_b32", v(NEG + i), v(mx))
    k.I("s_mov_b32", s(S_CNT), 0)

    lab_loop = k.newlabel("loop")
    lab_done = k.newlabel("done")
    slow = []
    k.L(lab_loop)
    read_kf(KF[0], 0)
    read_vf(VF[0], 0)
    for blk in range(8):
        cur = blk & 1
        qk(KF[cur], vr(NEG, 16))
        if blk < 7:
            read_kf(KF[cur ^ 1], blk + 1)
            read_vf(VF[cur ^ 1], blk + 1)
        maxtree()
        k.I("v_cmp_lt_f32", "vcc", f32bits(THR), v(mx))
        ls, lb = k.newlabel("slow"), k.newlabel("back")
        slow.append((ls, lb))
        k.I("s_cbranch_vccnz", ls)
        k.L(lb)
        for i in range(16):
            k.I("v_exp_f32", v(S + i), v(S + i))
        for i in range(8):
            k.I("v_cvt_pk_bf16_f32", v(P + i), v(S + 2 * i), v(S + 2 * i + 1))
        k.I("v_mfma_f32_32x32x16_bf16", vr(O, 16), vr(VF[cur], 4), vr(P, 4), vr(O, 16))
        k.I("v_mfma_f32_32x32x16_bf16", vr(O, 16), vr(VF[cur] + 4, 4), vr(P + 4, 4), vr(O, 16))
    k.wait(vm=0)
    k.I("s_barrier")
    k.I("s_add_u32", s(S_CNT), s(S_CNT), 1)
    k.I("s_cmp_ge_u32", s(S_CNT), 8)
    k.I("s_cbranch_scc1", lab_done)
    k.I("v_add_u32", v(ka), s(S_DELTA), v(ka))
    k.I("v_add_u32", v(va), s(S_DELTA), v(va))
    k.I("s_sub_u32", s(S_DELTA), 0, s(S_DELTA))
    k.I("s_cmp_ge_u32", s(S_CNT), 7)
    k.I("s_cbranch_scc1", lab_loop)
    k.I("s_add_u32", s(S_BUF), s(S_BUF), s(S_DELTA))
    issue_dma()
    k.I("s_branch", lab_loop)

    for (ls, lb) in slow:
        k.L(ls)
        both_halves_max()
        k.I("v_max_f32", v(mx), 0, v(mx))
        k.I("v_sub_f32", v(t0), 0, v(mx))
        k.I("v_exp_f32", v(t0), v(t0))
        k.I("v_sub_f32", v(t1), v(NEG), v(mx))
        for i in range(16):
            k.I("v_sub_f32", v(S + i), v(S + i), v(mx))
        for i in range(16):
            k.I("v_mul_f32", v(O + i), v(O + i), v(t0))
        for i in range(16):
            k.I("v_mov_b32", v(NEG + i), v(t1))
        k.I("s_branch", lb)

    k.L(lab_done)
    k.I("v_mov_b32", v(t0), v(O + 10))
    k.I("v_mov_b32", v(t1), v(O + 10))
    k.I("v_permlane32_swap_b32", v(t0), v(t1))
    k.I("v_rcp_f32", v(t0), v(t0))
    for i in range(10):
        k.I("v_mul_f32", v(O + i), v(O + i), v(t0))
    for i in range(5):
        k.I("v_cvt_pk_bf16_f32", v(P + i), v(O + 2 * i), v(O + 2 * i + 1))
    k.I("s_lshl_b32", s(S_T0), s(S_QT), 8)
    k.I("s_lshl_b32", s(S_T1), s(S_WAVE), 5)
    k.I("s_add_u32", s(S_T0), s(S_T0), s(S_T1))
    k.I("s_mul_i32", s(S_T0), s(S_T0), 1152)
    k.I("s_mul_i32", s(S_T1), s(S_HEAD), 36)
    k.I("s_add_u32", s(S_T0), s(S_T0), s(S_T1))
    k.I("s_add_u32", s(S_T0), s(S_T0), LY.O_OFF)
    k.I("v_mul_u32_u24", v(t1), 1152, v(vq))
    k.I("v_lshl_add_u32", v(t1), v(vh), 3, v(t1))
    for j, dd in enumerate((0, 2, 8, 10)):
        k.I("buffer_store_dword", v(P + j), v(t1), sr(S_WS, 4), s(S_T0), mods="offen offset:%d" % (dd * 2))
    k.I("v_cmp_eq_u32", "vcc", 0, v(vh))
    k.I("s_and_saveexec_b64", sr(S_SAVE, 2), "vcc")
    k.I("buffer_store_dword", v(P + 4), v(t1), sr(S_WS, 4), s(S_T0), mods="offen offset:32")
    k.I("s_mov_b64", "exec", sr(S_SAVE, 2))
    k.I("s_endpgm")


CS = 4384
UOFF = 8 * CS
TOFF = UOFF + 64 * 144
YOFF = TOFF + 704 * 4
OOFF = YOFF + 8192
LDS_CONV = OOFF + 16384
NCH = 4
S_CH = 17
S_DSK = 32
S_DS = 34


def role_conv(k):
    R = RA(1, 128)
    k.C("---- role: S4D conv ----")
    vl = R.a(); va_ = R.a(); vh = R.a()
    t = [R.a() for _ in range(8)]
    gl = R.a(4, 4)
    goff = R.a(); lwa = R.a()
    acc = R.a(16, 4)
    AF = [R.a(4, 4) for _ in range(4)]
    BF = [R.a(4, 4) for _ in range(4)]
    VA = R.a(); VB = R.a()
    w = R.a(16)
    E = R.a(8, 4); OD = R.a(8, 4); TQ = R.a(4, 4)
    k.I("v_and_b32", v(vl), 63, "v0")
    k.I("v_and_b32", v(va_), 31, "v0")
    k.I("v_bfe_u32", v(vh), "v0", 5, 1)
    k.I("v_lshrrev_b32", v(t[0]), 6, "v0")
    k.I("v_readfirstlane_b32", s(S_WAVE), v(t[0]))
    k.I("s_sub_u32", s(S_T0), "s2", 256)
    k.I("s_lshl_b32", s(S_CH), s(S_T0), 2)
    k.I("s_lshl_b32", s(S_T1), s(S_T0), 3)
    k.I("s_load_dwordx2", sr(S_DSK, 2), "s[4:5]", s(S_T1))
    k.I("v_cmp_le_u32", "vcc", 256, "v0")
    k.I("v_subrev_u32", v(t[0]), 256, "v0")
    k.I("v_lshrrev_b32", v(t[1]), 3, v(t[0]))
    k.I("v_mul_u32_u24", v(t[1]), 144, v(t[1]))
    k.I("v_and_b32", v(t[2]), 7, v(t[0]))
    k.I("v_lshl_add_u32", v(t[1]), v(t[2]), 4, v(t[1]))
    k.I("v_add_u32", v(t[1]), UOFF + 32 * 144, v(t[1]))
    k.I("v_lshlrev_b32", v(t[2]), 4, "v0")
    k.I("v_add_u32", v(t[3]), TOFF, v(t[2]))
    k.I("v_cndmask_b32", v(lwa), v(t[3]), v(t[1]), "vcc")
    k.I("v_lshlrev_b32", v(t[1]), 4, v(t[0]))
    k.I("v_cndmask_b32", v(goff), v(t[2]), v(t[1]), "vcc")
    k.I("v_mov_b32", v(t[4]), LY.KT_PITCH * 4)
    k.I("v_mov_b32", v(t[5]), 4096)
    k.I("v_cndmask_b32", v(t[4]), v(t[4]), v(t[5]), "vcc")
    k.I("v_mov_b32", v(t[5]), LY.KT_OFF)
    k.I("v_mov_b32", v(t[6]), LY.XT_OFF)
    k.I("v_cndmask_b32", v(t[5]), v(t[5]), v(t[6]), "vcc")
    k.I("v_mul_lo_u32", v(t[6]), v(t[4]), s(S_CH))
    k.I("v_add3_u32", v(goff), v(goff), v(t[5]), v(t[6]))
    vstride = R.a()
    k.I("v_mov_b32", v(vstride), v(t[4]))
    k.I("s_mov_b64", sr(S_SAVE2, 2), "vcc")
    k.I("v_cmp_gt_u32", "vcc", 176, "v0")
    k.I("s_or_b64", sr(S_SAVE2, 2), sr(S_SAVE2, 2), "vcc")

    def prefetch():
        k.I("s_mov_b64", sr(S_SAVE, 2), "exec")
        k.I("s_mov_b64", "exec", sr(S_SAVE2, 2))
        k.I("buffer_load_dwordx4", vr(gl, 4), v(goff), sr(S_WS, 4), 0, mods="offen")
        k.I("v_add_u32", v(goff), v(goff), v(vstride))
        k.I("s_mov_b64", "exec", sr(S_SAVE, 2))

    prefetch()
    for r in range(4):
        k.I("v_mov_b32", v(TQ + r), 0)
    k.I("v_cmp_gt_u32", "vcc", 288, "v0")
    k.I("s_and_saveexec_b64", sr(S_SAVE, 2), "vcc")
    k.I("v_lshlrev_b32", v(t[0]), 4, "v0")
    k.I("ds_write_b128", v(t[0]), vr(TQ, 4), mods="offset:%d" % UOFF)
    k.I("s_mov_b64", "exec", sr(S_SAVE, 2))
    k.I("s_and_b32", s(S_T0), s(S_WAVE), 1)
    k.I("s_lshr_b32", s(S_T1), s(S_WAVE), 1)
    k.I("v_sub_u32", v(t[0]), 2047, v(va_))
    k.I("v_and_b32", v(t[1]), 7, v(t[0]))
    k.I("v_mul_u32_u24", v(t[1]), CS, v(t[1]))
    k.I("v_lshrrev_b32", v(t[0]), 3, v(t[0]))
    k.I("v_add_u32", v(t[0]), v(t[0]), v(vh))
    k.I("s_lshl_b32", s(S_T2), s(S_T0), 2)
    k.I("s_lshl_b32", s(S_T3), s(S_T1), 3)
    k.I("s_add_u32", s(S_T2), s(S_T2), s(S_T3))
    k.I("s_add_u32", s(S_T2), s(S_T2), 224)
    k.I("v_subrev_u32", v(t[0]), s(S_T2), v(t[0]))
    k.I("v_lshl_add_u32", v(VA), v(t[0]), 4, v(t[1]))
    k.I("s_sub_u32", s(S_T2), 4, s(S_T1))
    k.I("v_add_u32", v(t[0]), s(S_T2), v(va_))
    k.I("v_mul_u32_u24", v(t[0]), 144, v(t[0]))
    k.I("v_lshl_add_u32", v(t[0]), v(vh), 4, v(t[0]))
    k.I("v_add_u32", v(VB), UOFF, v(t[0]))
    yra = R.a()
    k.I("s_lshl_b32", s(S_T2), s(S_T0), 5)
    k.I("v_lshl_add_u32", v(t[0]), v(vh), 2, s(S_T2))
    k.I("v_lshlrev_b32", v(t[0]), 5, v(t[0]))
    k.I("v_add_u32", v(t[0]), v(t[0]), v(va_))
    k.I("v_lshlrev_b32", v(t[0]), 2, v(t[0]))
    k.I("v_add_u32", v(yra), YOFF, v(t[0]))
    eb4 = R.a()
    k.I("v_lshrrev_b32", v(eb4), 5, "v0")
    k.wait(lgkm=0)

    for c in range(NCH):
        k.I("s_mov_b64", sr(S_SAVE, 2), "exec")
        k.I("s_mov_b64", "exec", sr(S_SAVE2, 2))
        k.I("ds_write_b128", v(lwa), vr(gl, 4))
        k.I("s_mov_b64", "exec", sr(S_SAVE, 2))
        k.I("v_lshlrev_b32", v(t[0]), 4, "v0")
        for r in range(4):
            k.I("v_mov_b32", v(TQ + r), 0)
        k.I("ds_write_b128", v(t[0]), vr(TQ, 4), mods="offset:%d" % YOFF)
        k.wait(lgkm=0)
        k.I("s_barrier")
        if c + 1 < NCH:
            prefetch()
        lab2 = k.newlabel("skipb")
        k.I("v_cmp_gt_u32", "vcc", 266, "v0")
        k.I("s_and_saveexec_b64", sr(S_SAVE, 2), "vcc")
        k.I("s_cbranch_execz", lab2)
        k.I("v_lshlrev_b32", v(t[0]), 3, "v0")
        k.I("v_sub_u32", v(t[0]), 2047, v(t[0]))
        for j in range(15):
            k.I("v_subrev_u32", v(t[1]), j, v(t[0]))
            k.I("v_max_i32", v(t[2]), 0, v(t[1]))
            k.I("v_cvt_f32_u32", v(t[3]), v(t[2]))
            k.I("v_cvt_pk_bf16_f32", v(t[3]), v(t[3]), v(t[3]))
            k.I("v_and_b32", v(t[3]), "0xffff", v(t[3]))
            k.I("v_subrev_u32", v(t[3]), 17024, v(t[3]))
            k.I("v_cmp_gt_u32", "vcc", 256, v(t[2]))
            k.I("v_cndmask_b32", v(t[3]), v(t[3]), v(t[2]), "vcc")
            k.I("v_lshlrev_b32", v(t[3]), 2, v(t[3]))
            k.I("ds_read_b32", v(w + j), v(t[3]), mods="offset:%d" % TOFF)
        k.I("v_mov_b32", v(w + 15), 0)
        for j in range(15):
            k.I("v_cmp_gt_i32", "vcc", j, v(t[0]))
            k.I("v_cndmask_b32", v(w + j), v(w + j), 0, "vcc")
        for i in range(7):
            k.I("v_cvt_pk_bf16_f32", v(E + i), v(w + 2 * i), v(w + 2 * i + 1))
            k.I("v_cvt_pk_bf16_f32", v(OD + i), v(w + 2 * i + 1), v(w + 2 * i + 2))
        k.I("v_lshlrev_b32", v(t[1]), 4, "v0")
        for cp in range(8):
            src = (E if cp % 2 == 0 else OD) + cp // 2
            if src % 2:
                for r in range(4):
                    k.I("v_mov_b32", v(TQ + r), v(src + r))
                src = TQ
            k.I("ds_write_b128", v(t[1]), vr(src, 4), mods="offset:%d" % (cp * CS))
        k.L(lab2)
        k.I("s_mov_b64", "exec", sr(S_SAVE, 2))
        k.wait(lgkm=0)
        k.I("s_barrier")
        for r in range(16):
            k.I("v_mov_b32", v(acc + r), 0)
        steps = [(j, ks) for j in range(8) for ks in range(4)]

        def rd(idx):
            j, ks = steps[idx]
            k.I("ds_read_b128", vr(AF[idx % 4], 4), v(VA), mods="offset:%d" % (512 * (7 - j) + 32 * ks))
            k.I("ds_read_b128", vr(BF[idx % 4], 4), v(VB), mods="offset:%d" % ((28 - 4 * j) * 144 + 32 * ks))
        for i in range(3):
            rd(i)
        for i in range(len(steps)):
            if i + 3 < len(steps):
                rd(i + 3)
            k.I("v_mfma_f32_32x32x16_bf16", vr(acc, 16), vr(AF[i % 4], 4), vr(BF[i % 4], 4), vr(acc, 16))
        for r in range(16):
            k.I("ds_add_f32", v(yra), v(acc + r), mods="offset:%d" % (((r & 3) + 8 * (r >> 2)) * 128))
        k.wait(lgkm=0)
        k.I("s_barrier")
        k.I("v_lshlrev_b32", v(t[0]), 7, v(eb4))
        k.I("v_lshlrev_b32", v(t[0]), 2, v(t[0]))
        k.I("v_lshl_add_u32", v(t[0]), v(va_), 2, v(t[0]))
        for i in range(4):
            k.I("ds_read_b32", v(w + i), v(t[0]), mods="offset:%d" % (YOFF + i * 128))
        k.I("v_mul_u32_u24", v(t[1]), 144, v(va_))
        k.I("v_lshl_add_u32", v(t[1]), v(eb4), 3, v(t[1]))
        k.I("ds_read_b64", vr(E, 2), v(t[1]), mods="offset:%d" % (UOFF + 32 * 144))
        if c == 0:
            k.wait(lgkm=0)
        if c % 2 == 0:
            k.I("s_lshl_b32", s(S_DS), s(S_DSK + c // 2), 16)
        else:
            k.I("s_and_b32", s(S_DS), s(S_DSK + c // 2), "0xffff0000")
        k.I("v_lshlrev_b32", v(w + 4), 16, v(E))
        k.I("v_and_b32", v(w + 5), "0xffff0000", v(E))
        k.I("v_lshlrev_b32", v(w + 6), 16, v(E + 1))
        k.I("v_and_b32", v(w + 7), "0xffff0000", v(E + 1))
        for i in range(4):
            k.I("v_mul_f32", v(w + 4 + i), s(S_DS), v(w + 4 + i))
        k.I("v_cvt_pk_bf16_f32", v(OD), v(w), v(w + 1))
        k.I("v_cvt_pk_bf16_f32", v(OD + 1), v(w + 2), v(w + 3))
        k.I("v_cvt_pk_bf16_f32", v(OD + 2), v(w + 4), v(w + 5))
        k.I("v_cvt_pk_bf16_f32", v(OD + 3), v(w + 6), v(w + 7))
        for i in range(2):
            k.I("v_lshlrev_b32", v(t[2]), 16, v(OD + i))
            k.I("v_lshlrev_b32", v(t[3]), 16, v(OD + 2 + i))
            k.I("v_add_f32", v(t[2]), v(t[2]), v(t[3]))
            k.I("v_and_b32", v(t[3]), "0xffff0000", v(OD + i))
            k.I("v_and_b32", v(t[4]), "0xffff0000", v(OD + 2 + i))
            k.I("v_add_f32", v(t[3]), v(t[3]), v(t[4]))
            k.I("v_cvt_pk_bf16_f32", v(TQ + i), v(t[2]), v(t[3]))
        k.I("v_lshlrev_b32", v(t[2]), 6, v(va_))
        k.I("v_lshl_add_u32", v(t[2]), v(eb4), 2, v(t[2]))
        k.I("v_lshlrev_b32", v(t[2]), 3, v(t[2]))
        k.I("ds_write_b16", v(t[2]), v(TQ), mods="offset:%d" % (OOFF + 2 * c))
        k.I("ds_write_b16_d16_hi", v(t[2]), v(TQ), mods="offset:%d" % (OOFF + 2 * c + 8))
        k.I("ds_write_b16", v(t[2]), v(TQ + 1), mods="offset:%d" % (OOFF + 2 * c + 16))
        k.I("ds_write_b16_d16_hi", v(t[2]), v(TQ + 1), mods="offset:%d" % (OOFF + 2 * c + 24))
        k.wait(lgkm=0)
        k.I("s_barrier")
    k.I("v_lshlrev_b32", v(t[0]), 3, "v0")
    k.I("v_add_u32", v(t[0]), OOFF, v(t[0]))
    k.I("v_mul_u32_u24", v(t[1]), 1152, "v0")
    k.I("s_lshl_b32", s(S_T0), s(S_CH), 1)
    k.I("s_add_u32", s(S_T0), s(S_T0), LY.B_OFF)
    for i in range(4):
        k.I("ds_read_b64", vr(AF[i], 2), v(t[0]), mods="offset:%d" % (i * 4096))
        k.I("s_add_u32", s(S_T1), s(S_T0), i * 512 * 1152)
        k.I("buffer_store_dwordx2", vr(AF[i], 2), v(t[1]), sr(S_WS, 4), s(S_T1), mods="offen")
    k.I("s_endpgm")


def build_k2():
    k = Kernel("k2_kernel")
    prologue_ptrs(k, [(8, 104), (4, 72)])
    lab_exit = k.newlabel("exit")
    lab_conv = k.newlabel("conv")
    k.wait(lgkm=0)
    make_srd(k, S_WS, 8, LY.WS_USED)
    k.I("s_cmp_ge_u32", "s2", 256 + 144)
    k.I("s_cbranch_scc1", lab_exit)
    k.I("s_cmp_ge_u32", "s2", 256)
    k.I("s_cbranch_scc1", lab_conv)
    role_attn(k)
    k.L(lab_conv)
    role_conv(k)
    k.L(lab_exit)
    k.I("s_endpgm")
    return k, dict(grid=400, block=512, lds=max(LDS_CONV, 2 * KVB))
```

```python
from asmlib import *
import layout as LY
from k1 import RA, f32bits, make_srd, prologue_ptrs

S_X, S_W, S_WS, S_OUT = 12, 16, 20, 24
S_WAVE = 28
S_XK, S_WKOFF = 29, 30
S_M0X, S_M0W = 31, 32
S_MT, S_NT = 33, 34
S_T0, S_T1, S_T2, S_T3 = 35, 36, 37, 38
S_S0 = 39


def build_k3(NW=2, NT=6, NSTAGE=3):
    k = Kernel("k3_kernel")
    BM, BN = 32 * NW, 16 * NT
    NMT = 2048 // BM
    NNT = 576 // BN
    NWG = NMT * NNT
    XT_B = BM * 128
    WP = BN * 2
    WT_B = 64 * WP
    WPIECES = WT_B // 1024
    assert WT_B % 1024 == 0
    STG = XT_B + WT_B
    WB0 = NSTAGE * XT_B
    LDS = NSTAGE * STG
    nthr = 64 * NW
    wp_per_wave = (WPIECES + NW - 1) // NW
    assert WPIECES % NW == 0
    prologue_ptrs(k, [(6, 16), (8, 104), (10, 88)])
    lab_exit = k.newlabel("exit")
    k.I("s_cmp_ge_u32", "s2", NWG)
    k.I("s_cbranch_scc1", lab_exit)
    k.wait(lgkm=0)
    make_srd(k, S_W, 6, 576 * 576 * 2)
    make_srd(k, S_WS, 8, LY.WS_USED)
    make_srd(k, S_OUT, 10, 2048 * 576 * 2)
    R = RA(1, 256)
    vl = R.a(); vi = R.a(); vg = R.a(); t0 = R.a(); t1 = R.a(); t2 = R.a()
    assert NMT & (NMT - 1) == 0
    k.I("s_and_b32", s(S_MT), "s2", NMT - 1)
    k.I("s_lshr_b32", s(S_NT), "s2", NMT.bit_length() - 1)
    k.I("v_and_b32", v(vl), 63, "v0")
    k.I("v_and_b32", v(vi), 15, "v0")
    k.I("v_lshrrev_b32", v(vg), 4, v(vl))
    k.I("v_lshrrev_b32", v(t0), 6, "v0")
    k.I("v_readfirstlane_b32", s(S_WAVE), v(t0))
    k.I("s_mul_i32", s(S_S0), s(S_MT), BM)
    k.I("s_lshl_b32", s(S_T1), s(S_WAVE), 5)
    k.I("s_add_u32", s(S_T0), s(S_S0), s(S_T1))
    k.I("s_mul_i32", s(S_XK), s(S_T0), 1152)
    k.I("s_add_u32", s(S_XK), s(S_XK), LY.O_OFF)
    k.I("s_mul_i32", s(S_WKOFF), s(S_NT), WP)
    k.I("s_lshl_b32", s(S_M0X), s(S_WAVE), 12)
    k.I("s_lshl_b32", s(S_M0W), s(S_WAVE), 10)
    k.I("s_add_u32", s(S_M0W), s(S_M0W), WB0)
    xd = R.a(4, 4)
    k.I("v_lshrrev_b32", v(t0), 3, v(vl))
    k.I("s_mov_b32", s(S_T2), 1152)
    k.I("v_mul_lo_u32", v(t0), v(t0), s(S_T2))
    k.I("v_and_b32", v(t1), 7, v(vl))
    k.I("v_xor_b32", v(t1), v(t1), v(vg))
    k.I("v_lshl_add_u32", v(xd), v(t1), 4, v(t0))
    k.I("v_xor_b32", v(t2), 64, v(xd))
    k.I("v_add_u32", v(xd + 1), 9216, v(t2))
    k.I("v_add_u32", v(xd + 2), 2 * 9216, v(xd))
    k.I("v_add_u32", v(xd + 3), 3 * 9216, v(t2))
    wd = R.a(wp_per_wave)
    upr = 2 * NT
    magic = (65536 + upr - 1) // upr
    for u in range(WPIECES * 64):
        assert (u * magic) >> 16 == u // upr
    k.I("s_mov_b32", s(S_T3), 1152)
    k.I("s_mov_b32", s(S_T2), magic)
    for i in range(wp_per_wave):
        k.I("v_add_u32", v(t0), nthr * i, "v0")
        k.I("v_mul_lo_u32", v(t1), v(t0), s(S_T2))
        k.I("v_lshrrev_b32", v(t1), 16, v(t1))
        k.I("v_mul_u32_u24", v(t2), upr, v(t1))
        k.I("v_sub_u32", v(t2), v(t0), v(t2))
        k.I("v_mul_lo_u32", v(t1), v(t1), s(S_T3))
        k.I("v_lshl_add_u32", v(wd + i), v(t2), 4, v(t1))
    xa = R.a(4)
    k.I("v_lshlrev_b32", v(t0), 5, s(S_WAVE))
    k.I("v_add_u32", v(t0), v(t0), v(vi))
    k.I("v_lshlrev_b32", v(t0), 7, v(t0))
    k.I("v_and_b32", v(t1), 1, v(vg))
    k.I("v_lshl_add_u32", v(t0), v(t1), 3, v(t0))
    k.I("v_lshrrev_b32", v(t1), 1, v(vg))
    k.I("v_lshrrev_b32", v(t2), 1, v(vi))
    for ks in range(2):
        for h in range(2):
            tt = v(xa + ks * 2 + h)
            k.I("v_add_u32", tt, 4 * ks + 2 * h, v(t1))
            k.I("v_xor_b32", tt, tt, v(t2))
            k.I("v_lshl_add_u32", tt, tt, 4, v(t0))
    wa = R.a()
    k.I("v_lshrrev_b32", v(t0), 2, v(vi))
    k.I("v_lshl_add_u32", v(t0), v(vg), 2, v(t0))
    k.I("v_mul_u32_u24", v(t0), WP, v(t0))
    k.I("v_and_b32", v(t1), 3, v(vi))
    k.I("v_lshl_add_u32", v(t0), v(t1), 3, v(t0))
    k.I("v_add_u32", v(wa), WB0, v(t0))
    acc = R.a(2 * NT * 4, 4)
    fx = R.a(16, 4)
    fw = R.a(2 * NT * 4, 4)
    for i in range(2 * NT * 4):
        k.I("v_mov_b32", v(acc + i), 0)
    NDMA = 4 + wp_per_wave

    def issue_dma(buf):
        for j in range(4):
            k.I("s_add_u32", "m0", s(S_M0X), buf * XT_B + j * 1024)
            k.I("buffer_load_dwordx4", v(xd + j), sr(S_WS, 4), s(S_XK), mods="offen lds")
        for i in range(wp_per_wave):
            k.I("s_add_u32", "m0", s(S_M0W), buf * WT_B + i * 1024 * NW)
            k.I("buffer_load_dwordx4", v(wd + i), sr(S_W, 4), s(S_WKOFF), mods="offen lds")
        k.I("s_add_u32", s(S_XK), s(S_XK), 128)
        k.I("s_add_u32", s(S_WKOFF), s(S_WKOFF), 64 * 1152)

    def read_frags(set_, buf, ks, t_list, with_x):
        if with_x:
            for st in range(2):
                for h in range(2):
                    k.I("ds_read_b64", vr(fx + set_ * 8 + st * 4 + h * 2, 2), v(xa + ks * 2 + h),
                        mods="offset:%d" % (buf * XT_B + st * 2048))
        for t in t_list:
            for h in range(2):
                k.I("ds_read_b64_tr_b16", vr(fw + set_ * NT * 4 + t * 4 + h * 2, 2), v(wa),
                    mods="offset:%d" % (buf * WT_B + ks * 32 * WP + h * 16 * WP + t * 32))

    def mfmas(set_, t):
        W = vr(fw + set_ * NT * 4 + t * 4, 4)
        for st in range(2):
            X = vr(fx + set_ * 8 + st * 4, 4)
            A = vr(acc + (st * NT + t) * 4, 4)
            k.I("v_mfma_f32_16x16x32_bf16", A, W, X, A)

    nkt = 9
    for p in range(NSTAGE - 1):
        issue_dma(p)
    for kt in range(nkt):
        buf = kt % NSTAGE
        ahead = min(NSTAGE - 2, nkt - 1 - kt)
        k.wait(vm=ahead * NDMA)
        k.I("s_barrier")
        if kt + NSTAGE - 1 < nkt:
            issue_dma((kt + NSTAGE - 1) % NSTAGE)
        read_frags(0, buf, 0, range(NT), True)
        for t in range(NT):
            read_frags(1, buf, 1, [t], t == 0)
            mfmas(0, t)
        for t in range(NT):
            mfmas(1, t)
    gs = R.a(2); og = R.a(2)
    k.I("s_lshl_b32", s(S_T1), s(S_WAVE), 5)
    k.I("s_add_u32", s(S_T0), s(S_S0), s(S_T1))
    k.I("s_lshl_b32", s(S_T1), s(S_T0), 2)
    k.I("s_add_u32", s(S_T1), s(S_T1), LY.G_OFF)
    k.I("v_lshlrev_b32", v(t0), 2, v(vi))
    k.I("buffer_load_dword", v(gs), v(t0), sr(S_WS, 4), s(S_T1), mods="offen")
    k.I("buffer_load_dword", v(gs + 1), v(t0), sr(S_WS, 4), s(S_T1), mods="offen offset:64")
    k.I("v_mul_u32_u24", v(t1), 1152, v(vi))
    k.I("v_lshl_add_u32", v(t1), v(vg), 3, v(t1))
    k.I("s_mul_i32", s(S_T2), s(S_T0), 1152)
    k.I("s_mul_i32", s(S_T3), s(S_NT), WP)
    k.I("s_add_u32", s(S_T2), s(S_T2), s(S_T3))
    k.I("s_add_u32", s(S_T3), s(S_T2), LY.B_OFF)
    bb = fw
    for st in range(2):
        k.I("s_add_u32", s(S_T1), s(S_T3), st * 16 * 1152)
        for t in range(NT):
            k.I("buffer_load_dwordx2", vr(bb + (st * NT + t) * 2, 2), v(t1), sr(S_WS, 4), s(S_T1), mods="offen offset:%d" % (32 * t))
    for st in range(2):
        k.I("v_sub_f32", v(og + st), 1.0, v(gs + st))
        k.I("v_cvt_pk_bf16_f32", v(og + st), v(og + st), v(og + st))
        k.I("v_lshlrev_b32", v(og + st), 16, v(og + st))
    tm = [R.a() for _ in range(8)]
    for st in range(2):
        k.I("s_add_u32", s(S_T1), s(S_T2), st * 16 * 1152)
        for t in range(NT):
            a = acc + (st * NT + t) * 4
            b2 = bb + (st * NT + t) * 2
            k.I("v_cvt_pk_bf16_f32", v(tm[0]), v(a), v(a + 1))
            k.I("v_cvt_pk_bf16_f32", v(tm[1]), v(a + 2), v(a + 3))
            k.I("v_lshlrev_b32", v(a), 16, v(tm[0]))
            k.I("v_and_b32", v(a + 1), "0xffff0000", v(tm[0]))
            k.I("v_lshlrev_b32", v(a + 2), 16, v(tm[1]))
            k.I("v_and_b32", v(a + 3), "0xffff0000", v(tm[1]))
            for r in range(4):
                k.I("v_mul_f32", v(a + r), v(gs + st), v(a + r))
            k.I("v_cvt_pk_bf16_f32", v(tm[0]), v(a), v(a + 1))
            k.I("v_cvt_pk_bf16_f32", v(tm[1]), v(a + 2), v(a + 3))
            k.I("v_lshlrev_b32", v(tm[2]), 16, v(b2))
            k.I("v_and_b32", v(tm[3]), "0xffff0000", v(b2))
            k.I("v_lshlrev_b32", v(tm[4]), 16, v(b2 + 1))
            k.I("v_and_b32", v(tm[5]), "0xffff0000", v(b2 + 1))
            for r in range(4):
                k.I("v_mul_f32", v(tm[2 + r]), v(og + st), v(tm[2 + r]))
            k.I("v_cvt_pk_bf16_f32", v(tm[2]), v(tm[2]), v(tm[3]))
            k.I("v_cvt_pk_bf16_f32", v(tm[3]), v(tm[4]), v(tm[5]))
            for hf in range(2):
                k.I("v_lshlrev_b32", v(tm[4]), 16, v(tm[hf]))
                k.I("v_lshlrev_b32", v(tm[5]), 16, v(tm[2 + hf]))
                k.I("v_add_f32", v(tm[4]), v(tm[4]), v(tm[5]))
                k.I("v_and_b32", v(tm[5]), "0xffff0000", v(tm[hf]))
                k.I("v_and_b32", v(tm[6]), "0xffff0000", v(tm[2 + hf]))
                k.I("v_add_f32", v(tm[5]), v(tm[5]), v(tm[6]))
                k.I("v_cvt_pk_bf16_f32", v(b2 + hf), v(tm[4]), v(tm[5]))
            k.I("buffer_store_dwordx2", vr(b2, 2), v(t1), sr(S_OUT, 4), s(S_T1), mods="offen offset:%d" % (32 * t))
    k.L(lab_exit)
    k.I("s_endpgm")
    return k, dict(grid=NWG, block=nthr, lds=LDS)
```

```python
S = 2048
D = 576
H = 32
DH = 18
NST = 128

QP_OFF = 0
QP_BYTES = H * S * 32 * 2
KV_OFF = QP_OFF + QP_BYTES
KPART = 256 * 48
VPITCH = 528
VPART = 10240
KVREC = KPART + VPART
KV_BYTES = H * 8 * KVREC
XT_OFF = KV_OFF + KV_BYTES
XT_BYTES = D * S * 2
KT_PITCH = 704
KT_OFF = XT_OFF + XT_BYTES
KT_BYTES = D * KT_PITCH * 4
G_OFF = KT_OFF + KT_BYTES
G_BYTES = S * 4
O_OFF = G_OFF + G_BYTES
O_BYTES = S * D * 2
B_OFF = O_OFF + O_BYTES
B_BYTES = S * D * 2
WS_USED = B_OFF + B_BYTES
WS_BYTES = 268435456
```

```python
import sys
sys.path.insert(0, "gen")
from asmlib import *
import layout as LY

HEADER = open("gated_mix__mha_block__ssm_conv_s4d__prompt.s.ref").read().split("; Override launch")[0]


def emit(kernels, path):
    out = [HEADER.rstrip("\n")]
    for k, cfg in kernels:
        out.append("; @launch kernel=%s grid=(%d,1,1) block=(%d,1,1) lds=%d" % (k.name, cfg["grid"], cfg["block"], cfg["lds"]))
    out.append('.amdgcn_target "amdgcn-amd-amdhsa--gfx950"')
    out.append(".text")
    seen = []
    for k, cfg in kernels:
        if k.name in seen:
            continue
        seen.append(k.name)
        k.auto_wait()
        errs = k.wait_check()
        for e in errs[:20]:
            print("WAITERR", e)
        k.hazard_pass()
        out.append(".globl %s" % k.name)
        out.append(".p2align 8")
        out.append(".type %s,@function" % k.name)
        out.append("%s:" % k.name)
        out.append(k.text())
    out.append('.section .rodata,"a"')
    seen = []
    for k, cfg in kernels:
        if k.name in seen:
            continue
        seen.append(k.name)
        nv = max(8, (k.max_v + 7) // 8 * 8)
        out.append(".p2align 6")
        out.append(".amdhsa_kernel %s" % k.name)
        out.append("  .amdhsa_next_free_vgpr %d" % nv)
        out.append("  .amdhsa_next_free_sgpr %d" % max(k.max_s, 16))
        out.append("  .amdhsa_accum_offset %d" % ((nv + 3) // 4 * 4))
        out.append("  .amdhsa_group_segment_fixed_size 0")
        out.append("  .amdhsa_kernarg_size 112")
        out.append("  .amdhsa_user_sgpr_count 2")
        out.append("  .amdhsa_user_sgpr_kernarg_segment_ptr 1")
        out.append("  .amdhsa_system_sgpr_workgroup_id_x 1")
        out.append(".end_amdhsa_kernel")
        print("%s: vgpr=%d sgpr=%d instrs=%d" % (k.name, k.max_v, k.max_s, sum(1 for i in k.items if isinstance(i, Ins))))
    open(path, "w").write("\n".join(out) + "\n")


if __name__ == "__main__":
    import k1, k2, k3
    ks = [k1.build_k1(), k2.build_k2(), k3.build_k3()]
    path = sys.argv[1] if len(sys.argv) > 1 else "gated_mix__mha_block__ssm_conv_s4d__prompt.s"
    emit(ks, path)
```

```python
import re

VCC = (1106, 1107)
EXEC = (1126, 1127)
M0 = 1124
SCC = 1200

_re_vr = re.compile(r"^v\[(\d+):(\d+)\]$")
_re_v = re.compile(r"^v(\d+)$")
_re_sr = re.compile(r"^s\[(\d+):(\d+)\]$")
_re_s = re.compile(r"^s(\d+)$")


def v(i):
    return "v%d" % i


def vr(i, n):
    assert n >= 1
    return "v%d" % i if n == 1 else "v[%d:%d]" % (i, i + n - 1)


def s(i):
    return "s%d" % i


def sr(i, n):
    return "s%d" % i if n == 1 else "s[%d:%d]" % (i, i + n - 1)


def regs_of(opnd):
    o = opnd.strip()
    if o.startswith("-") or o.startswith("|"):
        o = o.strip("-|")
    m = _re_vr.match(o)
    if m:
        return list(range(int(m.group(1)), int(m.group(2)) + 1))
    m = _re_v.match(o)
    if m:
        return [int(m.group(1))]
    m = _re_sr.match(o)
    if m:
        return [1000 + i for i in range(int(m.group(1)), int(m.group(2)) + 1)]
    m = _re_s.match(o)
    if m:
        return [1000 + int(m.group(1))]
    if o == "vcc":
        return list(VCC)
    if o == "exec":
        return list(EXEC)
    if o == "m0":
        return [M0]
    if o == "vcc_lo":
        return [VCC[0]]
    if o == "exec_lo":
        return [EXEC[0]]
    return []


TRANS = ("v_exp_f32", "v_log_f32", "v_rcp_f32", "v_rsq_f32", "v_sqrt_f32", "v_sin_f32", "v_cos_f32",
         "v_rcp_iflag_f32")
MFMA_INFO = {
    "v_mfma_f32_32x32x16_bf16": (8, "xdl", 16),
    "v_mfma_f32_16x16x32_bf16": (4, "xdl", 4),
    "v_mfma_f32_32x32x2_f32": (16, "sgemm", 16),
    "v_mfma_f32_16x16x4_f32": (8, "sgemm", 4),
}


class Ins:
    __slots__ = ("op", "opnds", "mods", "kind", "wr", "rd", "text", "label", "comment", "flags")

    def __init__(self, op, opnds, mods="", comment=""):
        self.op = op
        self.opnds = [str(o) for o in opnds]
        self.mods = mods
        self.comment = comment
        self.label = None
        self.flags = set()
        m = re.search(r"offset:(\d+)", mods)
        if m:
            lim = 65535 if op.startswith("ds_") else 4095
            assert int(m.group(1)) <= lim, "offset too large: %s %s" % (op, mods)
        self.classify()

    def classify(self):
        op = self.op
        O = self.opnds
        wr, rd = [], []
        R = regs_of
        if op.startswith("v_mfma"):
            self.kind = "mfma"
            wr = R(O[0])
            rd = R(O[1]) + R(O[2]) + R(O[3])
        elif op.startswith("v_"):
            self.kind = "trans" if op in TRANS else "valu"
            if op.startswith("v_cmp"):
                wr = R(O[0])
                rd = sum((R(x) for x in O[1:]), [])
                if op.startswith("v_cmpx"):
                    wr = wr + list(EXEC)
            elif op.startswith("v_readfirstlane") or op.startswith("v_readlane"):
                wr = R(O[0])
                rd = sum((R(x) for x in O[1:]), [])
                self.flags.add("readlane")
            elif op.startswith("v_permlane") or op.startswith("v_swap"):
                wr = R(O[0]) + R(O[1])
                rd = R(O[0]) + R(O[1])
                self.flags.add("permlane")
            else:
                wr = R(O[0])
                rd = sum((R(x) for x in O[1:]), [])
                base = op[:-4] if op.endswith("_e32") or op.endswith("_e64") else op
                if base in ("v_cndmask_b32",) and len(O) == 3:
                    rd += list(VCC)
                if base in ("v_add_co_u32", "v_sub_co_u32", "v_subrev_co_u32", "v_addc_co_u32", "v_subb_co_u32"):
                    wr = R(O[0]) + R(O[1])
                    rd = sum((R(x) for x in O[2:]), [])
                if base in ("v_fmac_f32", "v_mac_f32", "v_pk_fmac_f16", "v_dot2c_f32_bf16", "v_fmaak_f32x"):
                    rd += R(O[0])
                if "dpp" in self.mods or "row_" in self.mods or "quad_perm" in self.mods or op.endswith("_dpp"):
                    self.flags.add("dpp")
                    rd += R(O[0])
                if "sdwa" in op or "dst_sel" in self.mods:
                    rd += R(O[0])
                if "op_sel" in self.mods and base in ("v_cvt_pk_bf16_f32",):
                    pass
        elif op.startswith("buffer_") or op.startswith("global_") or op.startswith("flat_"):
            self.kind = "vmem"
            is_store = "_store" in op
            is_atomic = "_atomic" in op
            lds = re.search(r"\blds\b", self.mods) is not None or "_lds_" in op
            if is_store:
                rd = sum((R(x) for x in O), [])
                self.flags.add("store")
                if "x4" in op or "x3" in op:
                    self.flags.add("widestore")
            elif lds:
                rd = sum((R(x) for x in O), []) + [M0]
                self.flags.add("ldsdma")
            elif is_atomic:
                rd = sum((R(x) for x in O), [])
                if "glc" in self.mods or "sc0" in self.mods:
                    wr = R(O[0])
            else:
                wr = R(O[0])
                rd = sum((R(x) for x in O[1:]), [])
        elif op.startswith("ds_"):
            self.kind = "ds"
            if op.startswith("ds_read") or op.startswith("ds_bpermute") or op.startswith("ds_permute") or op.startswith("ds_swizzle"):
                wr = R(O[0])
                rd = sum((R(x) for x in O[1:]), [])
            else:
                rd = sum((R(x) for x in O), [])
                self.flags.add("store")
        elif op.startswith("s_"):
            if op.startswith("s_load") or op.startswith("s_buffer_load"):
                self.kind = "smem"
                wr = R(O[0])
                rd = sum((R(x) for x in O[1:]), [])
            elif op in ("s_waitcnt", "s_barrier", "s_nop", "s_endpgm", "s_setprio", "s_sleep") or op.startswith("s_branch") or op.startswith("s_cbranch"):
                self.kind = "sctl"
                if op == "s_cbranch_vccnz" or op == "s_cbranch_vccz":
                    rd = list(VCC)
                if op in ("s_cbranch_execz", "s_cbranch_execnz"):
                    rd = list(EXEC)
            else:
                self.kind = "salu"
                if op.startswith("s_cmp") or op.startswith("s_bitcmp"):
                    rd = sum((R(x) for x in O), [])
                else:
                    wr = R(O[0])
                    rd = sum((R(x) for x in O[1:]), [])
                    if "saveexec" in op:
                        wr = wr + list(EXEC)
                        rd = rd + list(EXEC)
        else:
            raise ValueError("unknown op " + op)
        self.wr = wr
        self.rd = rd

    def states(self):
        if self.op == "s_nop":
            return int(self.opnds[0], 0) + 1
        return 1

    def __str__(self):
        t = "    " + self.op
        if self.opnds:
            t += " " + ", ".join(self.opnds)
        if self.mods:
            t += " " + self.mods
        if self.comment:
            t += "    ; " + self.comment
        return t


class Label:
    def __init__(self, name):
        self.name = name

    def __str__(self):
        return self.name + ":"


class Raw:
    def __init__(self, text):
        self.text = text

    def __str__(self):
        return self.text


def _ov(a, b):
    if not a or not b:
        return False
    return not set(a).isdisjoint(b)


def _vg(regs):
    return [r for r in regs if r < 1000]


def _sg(regs):
    return [r for r in regs if r >= 1000]


def required_states(p, c):
    need = 0
    pk, ck = p.kind, c.kind
    p_valu = pk in ("valu", "trans")
    c_valu = ck in ("valu", "trans")
    pwv, pws = _vg(p.wr), _sg(p.wr)
    crv, crs = _vg(c.rd), _sg(c.rd)
    cwv = _vg(c.wr)
    if p_valu and ck == "mfma" and _ov(pwv, crv):
        need = max(need, 2)
    if pk == "mfma":
        passes, cls, dsz = MFMA_INFO[p.op]
        D = p.wr
        idx = {2: 0, 4: 1, 8: 2, 16: 3}[passes]
        if ck == "mfma":
            cA = regs_of(c.opnds[1]) + regs_of(c.opnds[2])
            cC = regs_of(c.opnds[3])
            cpasses, ccls, _ = MFMA_INFO[c.op]
            if _ov(D, cC):
                if cC == D and c.op == p.op:
                    need = max(need, 2 if passes == 2 else 0)
                else:
                    if cls == "xdl":
                        need = max(need, (4, 6, 10, 18)[idx] if ccls == "xdl" else (3, 6, 10, 18)[idx])
                    else:
                        need = max(need, (2, 4, 8, 16)[idx] if ccls == "sgemm" else 0)
            if _ov(D, cA):
                need = max(need, (5, 8, 12, 20)[idx] if cls == "xdl" else (4, 6, 10, 18)[idx])
            if _ov(D, c.wr) and not _ov(D, cC):
                need = max(need, (5, 8, 12, 20)[idx] if cls == "xdl" else (4, 6, 10, 18)[idx])
        elif c_valu or ck in ("vmem", "ds"):
            if _ov(D, crv) or _ov(D, cwv):
                need = max(need, (5, 8, 12, 20)[idx] if cls == "xdl" else (4, 6, 10, 18)[idx])
        if cls == "xdl" and c_valu:
            pC = regs_of(p.opnds[3])
            if _ov(pC, cwv):
                need = max(need, (1, 3, 7, 15)[idx])
    if pk == "trans" and ck == "valu" and (_ov(pwv, crv) or _ov(pwv, cwv)):
        need = max(need, 1)
    if p_valu:
        if pws:
            if c_valu and _ov(pws, crs):
                need = max(need, 4 if "readlane" in c.flags else 2)
            if ck == "vmem" and _ov(pws, crs):
                need = max(need, 5)
            if ck == "sctl" and _ov(pws, crs):
                need = max(need, 5)
            if ck in ("salu", "smem") and _ov(pws, crs):
                need = max(need, 2)
        if "readlane" in c.flags and _ov(pwv, crv):
            need = max(need, 1)
        if ("dpp" in c.flags or "permlane" in c.flags) and _ov(pwv, crv):
            need = max(need, 2)
        if _ov(pws, EXEC) and "dpp" in c.flags:
            need = max(need, 5)
        if _ov(pws, EXEC) and ck == "mfma":
            need = max(need, 4)
    if "widestore" in p.flags:
        data = regs_of(p.opnds[0])
        if _ov(data, cwv):
            need = max(need, 2 if c_valu else 1)
    if pk == "salu" and M0 in p.wr and (M0 in c.rd):
        need = max(need, 1)
    return need


class Kernel:
    def __init__(self, name):
        self.name = name
        self.items = []
        self.max_v = 0
        self.max_s = 0
        self._lab = 0

    def I(self, op, *opnds, mods="", comment=""):
        ins = Ins(op, opnds, mods, comment)
        self.items.append(ins)
        for r in ins.wr + ins.rd:
            if r < 1000:
                self.max_v = max(self.max_v, r + 1)
            elif r < 1102:
                self.max_s = max(self.max_s, r - 1000 + 1)
        return ins

    def L(self, name):
        self.items.append(Label(name))

    def C(self, text):
        self.items.append(Raw("    ; " + text))

    def newlabel(self, base="L"):
        self._lab += 1
        return "%s_%s_%d" % (self.name, base, self._lab)

    def wait(self, vm=None, lgkm=None):
        parts = []
        if vm is not None:
            parts.append("vmcnt(%d)" % vm)
        if lgkm is not None:
            parts.append("lgkmcnt(%d)" % lgkm)
        self.I("s_waitcnt", " ".join(parts))

    def _label_index(self):
        return {it.name: i for i, it in enumerate(self.items) if isinstance(it, Label)}

    def hazard_pass(self):
        items = self.items
        out = []
        branch_src = {}
        for i, it in enumerate(items):
            if isinstance(it, Ins) and (it.op.startswith("s_branch") or it.op.startswith("s_cbranch")):
                branch_src.setdefault(it.opnds[0], []).append(i)

        def lookback(seq, pos, c, dist, depth=0):
            worst = 0
            j = pos
            while j >= 0 and dist < 21:
                it = seq[j]
                if isinstance(it, Label):
                    if depth < 3:
                        for b in branch_src.get(it.name, []):
                            worst = max(worst, lookback(items, b, c, dist, depth + 1))
                    j -= 1
                    continue
                if isinstance(it, Raw):
                    j -= 1
                    continue
                if it.op == "s_endpgm" or it.op == "s_branch":
                    if not (depth > 0 and j == pos):
                        break
                req = required_states(it, c)
                if req > dist:
                    worst = max(worst, req - dist)
                dist += it.states()
                j -= 1
            return worst

        for it in items:
            if isinstance(it, Ins):
                need = lookback(out, len(out) - 1, it, 0)
                if need > 0:
                    nop = Ins("s_nop", [str(need - 1)])
                    out.append(nop)
            out.append(it)
        self.items = out

    def wait_check(self, verbose=True):
        items = self.items
        lab = self._label_index()
        errors = []
        vmq = []
        lgq = []
        i = 0
        taken = {}
        steps = 0
        n = len(items)
        while i < n:
            steps += 1
            if steps > 5_000_000:
                errors.append("wait_check: too many steps")
                break
            it = items[i]
            if not isinstance(it, Ins):
                i += 1
                continue
            if it.op == "s_waitcnt":
                t = it.opnds[0]
                m = re.search(r"vmcnt\((\d+)\)", t)
                if m:
                    k = int(m.group(1))
                    while len(vmq) > k:
                        vmq.pop(0)
                m = re.search(r"lgkmcnt\((\d+)\)", t)
                if m:
                    k = int(m.group(1))
                    if any(e[2] for e in lgq):
                        if k == 0:
                            lgq = []
                        else:
                            pass
                    else:
                        while len(lgq) > k:
                            lgq.pop(0)
                i += 1
                continue
            touched = set(it.rd) | set(it.wr)
            for q, nm in ((vmq, "vmcnt"), (lgq, "lgkmcnt")):
                for e in q:
                    if touched & set(e[0]):
                        errors.append("%s: line %d '%s' touches regs pending from line %d '%s' (%s)" % (
                            self.name, i, str(it).strip(), e[1], str(items[e[1]]).strip(), nm))
            if it.kind == "vmem":
                vmq.append((list(it.wr), i))
                if len(vmq) > 63:
                    errors.append("%s: vmcnt overflow at %d" % (self.name, i))
            elif it.kind == "ds":
                lgq.append((list(it.wr), i, False))
            elif it.kind == "smem":
                lgq.append((list(it.wr), i, True))
            if it.op == "s_endpgm":
                vmq, lgq = [], []
                i += 1
                continue
            if it.op == "s_branch":
                tgt = lab[it.opnds[0]]
                if tgt < i:
                    c = taken.get(i, 0)
                    if c < 1:
                        taken[i] = c + 1
                        i = tgt
                    else:
                        i += 1
                    continue
                i = tgt
                continue
            if it.op.startswith("s_cbranch"):
                tgt = lab[it.opnds[0]]
                if tgt < i:
                    c = taken.get(i, 0)
                    if c < 1:
                        taken[i] = c + 1
                        i = tgt
                        continue
            i += 1
        seen = set()
        uniq = []
        for e in errors:
            if e not in seen:
                seen.add(e)
                uniq.append(e)
        return uniq


    def auto_wait(self):
        out = []
        vmq, lgq = [], []
        for it in self.items:
            if not isinstance(it, Ins):
                out.append(it)
                continue
            if it.op == "s_waitcnt":
                t = it.opnds[0]
                m = re.search(r"vmcnt\((\d+)\)", t)
                if m:
                    k = int(m.group(1))
                    while len(vmq) > k:
                        vmq.pop(0)
                m = re.search(r"lgkmcnt\((\d+)\)", t)
                if m:
                    k = int(m.group(1))
                    if any(e[1] for e in lgq):
                        if k == 0:
                            lgq = []
                    else:
                        while len(lgq) > k:
                            lgq.pop(0)
                out.append(it)
                continue
            touched = set(it.rd) | set(it.wr)
            needv = needl = None
            for j in range(len(vmq) - 1, -1, -1):
                if touched & set(vmq[j][0]):
                    needv = len(vmq) - 1 - j
                    break
            for j in range(len(lgq) - 1, -1, -1):
                if touched & set(lgq[j][0]):
                    needl = len(lgq) - 1 - j
                    break
            if needl is not None and any(e[1] for e in lgq):
                needl = 0
            if needv is not None or needl is not None:
                parts = []
                if needv is not None:
                    needv = min(needv, 63)
                    parts.append("vmcnt(%d)" % needv)
                    while len(vmq) > needv:
                        vmq.pop(0)
                if needl is not None:
                    needl = min(needl, 15)
                    parts.append("lgkmcnt(%d)" % needl)
                    if needl == 0:
                        lgq = []
                    else:
                        while len(lgq) > needl:
                            lgq.pop(0)
                out.append(Ins("s_waitcnt", [" ".join(parts)]))
            if it.kind == "vmem":
                vmq.append((list(it.wr), False))
            elif it.kind == "ds":
                lgq.append((list(it.wr), False))
            elif it.kind == "smem":
                lgq.append((list(it.wr), True))
            out.append(it)
            if it.op == "s_endpgm":
                vmq, lgq = [], []
        self.items = out

    def stamp_init(self, base=64):
        self.st_base = base
        self.st_n = 0

    def stamp(self, name=""):
        if not getattr(self, "st_base", None):
            return
        r = self.st_base + 2 + self.st_n
        assert r < 100
        self.I("s_memtime", sr(self.st_base, 2))
        self.I("s_waitcnt", "lgkmcnt(0)")
        self.I("s_mov_b32", s(r), s(self.st_base), comment="stamp %d %s" % (self.st_n, name))
        self.st_n += 1

    def stampv_init(self, vreg, base=64):
        self.sv_reg = vreg
        self.sv_base = base
        self.I("s_mov_b32", s(base + 2), 0)
        self.I("v_mov_b32", v(vreg), 0)

    def stampv(self, name=""):
        if getattr(self, "sv_reg", None) is None:
            return
        b = self.sv_base
        self.I("s_memtime", sr(b, 2))
        self.I("s_waitcnt", "lgkmcnt(0)")
        self.I("s_mov_b32", "m0", s(b + 2))
        self.I("s_nop", 0)
        self.I("v_writelane_b32", v(self.sv_reg), s(b), "m0", comment="stampv " + name)
        self.I("s_add_u32", s(b + 2), s(b + 2), 1)

    def stampv_dump(self, vtmp1):
        b = self.sv_base
        self.I("s_load_dwordx2", sr(b, 2), "s[0:1]", 96)
        self.I("s_waitcnt", "lgkmcnt(0)")
        self.I("s_mov_b32", s(b + 2), 256)
        self.I("s_mov_b32", s(b + 3), "0x00020000")
        self.I("v_mbcnt_lo_u32_b32", v(vtmp1), -1, 0)
        self.I("v_mbcnt_hi_u32_b32", v(vtmp1), -1, v(vtmp1))
        self.I("v_lshlrev_b32", v(vtmp1), 2, v(vtmp1))
        self.I("buffer_store_dword", v(self.sv_reg), v(vtmp1), sr(b, 4), 0, mods="offen")
        self.I("s_waitcnt", "vmcnt(0)")

    def stamp_dump(self, vtmp0, vtmp1):
        b = self.st_base
        n = self.st_n
        self.I("v_mov_b32", v(vtmp0), 0)
        regs = [b + 2 + i for i in range(n)]
        for i, r in enumerate(regs):
            self.I("v_mov_b32", v(vtmp1), s(r))
            self.I("v_writelane_b32", v(vtmp0), s(r), i)
        self.I("s_load_dwordx2", sr(b, 2), "s[0:1]", 96)
        self.I("s_waitcnt", "lgkmcnt(0)")
        self.I("s_mov_b32", s(b + 2), 256)
        self.I("s_mov_b32", s(b + 3), "0x00020000")
        self.I("v_mbcnt_lo_u32_b32", v(vtmp1), -1, 0)
        self.I("v_mbcnt_hi_u32_b32", v(vtmp1), -1, v(vtmp1))
        self.I("v_lshlrev_b32", v(vtmp1), 2, v(vtmp1))
        self.I("buffer_store_dword", v(vtmp0), v(vtmp1), sr(b, 4), 0, mods="offen")
        self.I("s_waitcnt", "vmcnt(0)")

    def text(self):
        return "\n".join(str(it) for it in self.items)
```

```python
import sys
sys.path.insert(0, "gen")
from asmlib import *
import layout as LY

HEADER = open("gated_mix__mha_block__ssm_conv_s4d__prompt.s.ref").read().split("; Override launch")[0]


def emit(kernels, path):
    out = [HEADER.rstrip("\n")]
    for k, cfg in kernels:
        out.append("; @launch kernel=%s grid=(%d,1,1) block=(%d,1,1) lds=%d" % (k.name, cfg["grid"], cfg["block"], cfg["lds"]))
    out.append('.amdgcn_target "amdgcn-amd-amdhsa--gfx950"')
    out.append(".text")
    seen = []
    for k, cfg in kernels:
        if k.name in seen:
            continue
        seen.append(k.name)
        k.auto_wait()
        errs = k.wait_check()
        for e in errs[:20]:
            print("WAITERR", e)
        k.hazard_pass()
        out.append(".globl %s" % k.name)
        out.append(".p2align 8")
        out.append(".type %s,@function" % k.name)
        out.append("%s:" % k.name)
        out.append(k.text())
    out.append('.section .rodata,"a"')
    seen = []
    for k, cfg in kernels:
        if k.name in seen:
            continue
        seen.append(k.name)
        nv = max(8, (k.max_v + 7) // 8 * 8)
        out.append(".p2align 6")
        out.append(".amdhsa_kernel %s" % k.name)
        out.append("  .amdhsa_next_free_vgpr %d" % nv)
        out.append("  .amdhsa_next_free_sgpr %d" % max(k.max_s, 16))
        out.append("  .amdhsa_accum_offset %d" % ((nv + 3) // 4 * 4))
        out.append("  .amdhsa_group_segment_fixed_size 0")
        out.append("  .amdhsa_kernarg_size 112")
        out.append("  .amdhsa_user_sgpr_count 2")
        out.append("  .amdhsa_user_sgpr_kernarg_segment_ptr 1")
        out.append("  .amdhsa_system_sgpr_workgroup_id_x 1")
        out.append(".end_amdhsa_kernel")
        print("%s: vgpr=%d sgpr=%d instrs=%d" % (k.name, k.max_v, k.max_s, sum(1 for i in k.items if isinstance(i, Ins))))
    open(path, "w").write("\n".join(out) + "\n")


if __name__ == "__main__":
    import k1, k2, k3
    ks = [k1.build_k1(), k2.build_k2(conv_only="conv_only" in sys.argv, prof=("attn" if "prof_attn" in sys.argv else "conv" if "prof" in sys.argv else False)), k3.build_k3()]
    opts = sys.argv[2:]
    if "attn_only" in opts:
        ks[1][1]["grid"] = 256
    path = sys.argv[1] if len(sys.argv) > 1 else "gated_mix__mha_block__ssm_conv_s4d__prompt.s"
    emit(ks, path)
```

```python
from asmlib import *
import layout as LY

LOG2E = 1.4426950408889634
QSCALE = (18 ** -0.5) * LOG2E


def f32bits(x):
    import struct
    return struct.unpack("<I", struct.pack("<f", x))[0]


class RA:
    def __init__(self, start, limit=256):
        self.n = start
        self.limit = limit

    def a(self, cnt=1, align=1):
        if cnt >= 4:
            align = max(align, 4)
        elif cnt == 2:
            align = max(align, 2)
        self.n = (self.n + align - 1) // align * align
        r = self.n
        self.n += cnt
        assert self.n <= self.limit, "out of registers"
        return r


S_X, S_W, S_WS = 12, 16, 20
S_WAVE = 24
S_XK, S_WKOFF = 25, 26
S_M0X, S_M0W = 27, 28
S_MT, S_NT = 29, 30
S_T0, S_T1, S_T2, S_T3 = 31, 32, 33, 34
S_SAVE = 36
S_H0 = 38
S_S0 = 39
S_C0, S_C1 = 40, 41

XBUF = 16384
WBUF = 18432
WBASE = 32768
LDS_K1 = WBASE + 2 * WBUF


def prologue_ptrs(k, slots):
    for sp, off in slots:
        k.I("s_load_dwordx2", sr(sp, 2), "s[0:1]", off)


def make_srd(k, sd, sp, nbytes):
    k.I("s_mov_b32", s(sd), s(sp))
    k.I("s_mov_b32", s(sd + 1), s(sp + 1))
    k.I("s_mov_b32", s(sd + 2), nbytes)
    k.I("s_mov_b32", s(sd + 3), "0x00020000")


def gemm_mainloop(k, R, orient, nkt, xrow_bytes, wrow_bytes, vt):
    acc = vt["acc"]
    xa = vt["xa"]
    wa = vt["wa"]
    xd = vt["xd"]
    wd = vt["wd"]
    fx = vt["fx"]
    fw = vt["fw"]
    for i in range(72):
        k.I("v_mov_b32", v(acc + i), 0)

    def issue_dma(buf):
        for j in range(4):
            k.I("s_add_u32", "m0", s(S_M0X), buf * XBUF + j * 1024)
            k.I("buffer_load_dwordx4", v(xd + j), sr(S_X, 4), s(S_XK), mods="offen lds")
        for i in range(4):
            k.I("s_add_u32", "m0", s(S_M0W), buf * WBUF + i * 4096)
            k.I("buffer_load_dwordx4", v(wd + i), sr(S_W, 4), s(S_WKOFF), mods="offen lds")
        lab = k.newlabel("skipw")
        k.I("s_cmp_ge_u32", s(S_WAVE), 2)
        k.I("s_cbranch_scc1", lab)
        k.I("s_add_u32", "m0", s(S_M0W), buf * WBUF + 4 * 4096)
        k.I("buffer_load_dwordx4", v(wd + 4), sr(S_W, 4), s(S_WKOFF), mods="offen lds")
        k.L(lab)
        k.I("s_add_u32", s(S_XK), s(S_XK), 128)
        k.I("s_add_u32", s(S_WKOFF), s(S_WKOFF), 64 * wrow_bytes)

    def read_frags(set_, buf, ks, t_list, with_x):
        if with_x:
            for st in range(2):
                for h in range(2):
                    k.I("ds_read_b64", vr(fx + set_ * 8 + st * 4 + h * 2, 2), v(xa + ks * 2 + h),
                        mods="offset:%d" % (buf * XBUF + st * 2048))
        for t in t_list:
            for h in range(2):
                k.I("ds_read_b64_tr_b16", vr(fw + set_ * 36 + t * 4 + h * 2, 2), v(wa),
                    mods="offset:%d" % (buf * WBUF + ks * 9216 + h * 4608 + t * 32))

    def mfmas(set_, t):
        W = vr(fw + set_ * 36 + t * 4, 4)
        for st in range(2):
            X = vr(fx + set_ * 8 + st * 4, 4)
            A = vr(acc + (st * 9 + t) * 4, 4)
            if orient == "NS":
                k.I("v_mfma_f32_16x16x32_bf16", A, W, X, A)
            else:
                k.I("v_mfma_f32_16x16x32_bf16", A, X, W, A)

    issue_dma(0)
    for kt in range(nkt):
        buf = kt & 1
        k.wait(vm=0)
        k.I("s_barrier")
        if kt + 1 < nkt:
            issue_dma(buf ^ 1)
        read_frags(0, buf, 0, range(9), True)
        for t in range(9):
            read_frags(1, buf, 1, [t], t == 0)
            mfmas(0, t)
        for t in range(9):
            mfmas(1, t)
    return acc


def role_gemm1(k):
    R = RA(1)
    vt = {}
    k.C("---- role: QKV GEMM ----")
    k.I("s_and_b32", s(S_MT), "s2", 15)
    k.I("s_lshr_b32", s(S_NT), "s2", 4)
    vl = R.a(); vi = R.a(); vg = R.a(); t0 = R.a(); t1 = R.a(); t2 = R.a()
    k.I("v_and_b32", v(vl), 63, "v0")
    k.I("v_and_b32", v(vi), 15, "v0")
    k.I("v_lshrrev_b32", v(vg), 4, v(vl))
    k.I("v_lshrrev_b32", v(t0), 6, "v0")
    k.I("v_readfirstlane_b32", s(S_WAVE), v(t0))
    k.I("s_lshl_b32", s(S_T0), s(S_MT), 7)
    k.I("s_mov_b32", s(S_S0), s(S_T0))
    k.I("s_lshl_b32", s(S_T1), s(S_WAVE), 5)
    k.I("s_add_u32", s(S_T0), s(S_T0), s(S_T1))
    k.I("s_mul_i32", s(S_XK), s(S_T0), 1152)
    k.I("s_mul_i32", s(S_WKOFF), s(S_NT), 288)
    k.I("s_lshl_b32", s(S_M0X), s(S_WAVE), 12)
    k.I("s_lshl_b32", s(S_M0W), s(S_WAVE), 10)
    k.I("s_add_u32", s(S_M0W), s(S_M0W), WBASE)
    xd = R.a(4, 4); vt["xd"] = xd
    k.I("v_lshrrev_b32", v(t0), 3, v(vl))
    k.I("s_mov_b32", s(S_T2), 1152)
    k.I("v_mul_lo_u32", v(t0), v(t0), s(S_T2))
    k.I("v_and_b32", v(t1), 7, v(vl))
    k.I("v_xor_b32", v(t1), v(t1), v(vg))
    k.I("v_lshl_add_u32", v(xd), v(t1), 4, v(t0))
    k.I("v_xor_b32", v(t2), 64, v(xd))
    k.I("v_add_u32", v(xd + 1), 9216, v(t2))
    k.I("v_add_u32", v(xd + 2), 2 * 9216, v(xd))
    k.I("v_add_u32", v(xd + 3), 3 * 9216, v(t2))
    wd = R.a(5); vt["wd"] = wd
    k.I("s_mov_b32", s(S_T3), 3456)
    k.I("s_movk_i32", s(S_T2), 3641)
    for i in range(5):
        k.I("v_add_u32", v(t0), 256 * i, "v0")
        k.I("v_mul_lo_u32", v(t1), v(t0), s(S_T2))
        k.I("v_lshrrev_b32", v(t1), 16, v(t1))
        k.I("v_mul_u32_u24", v(t2), 18, v(t1))
        k.I("v_sub_u32", v(t2), v(t0), v(t2))
        k.I("v_mul_lo_u32", v(t1), v(t1), s(S_T3))
        k.I("v_lshl_add_u32", v(wd + i), v(t2), 4, v(t1))
    xa = R.a(4); vt["xa"] = xa
    k.I("v_lshlrev_b32", v(t0), 5, s(S_WAVE))
    k.I("v_add_u32", v(t0), v(t0), v(vi))
    k.I("v_lshlrev_b32", v(t0), 7, v(t0))
    k.I("v_and_b32", v(t1), 1, v(vg))
    k.I("v_lshl_add_u32", v(t0), v(t1), 3, v(t0))
    k.I("v_lshrrev_b32", v(t1), 1, v(vg))
    k.I("v_lshrrev_b32", v(t2), 1, v(vi))
    for ks in range(2):
        for h in range(2):
            tt = v(xa + ks * 2 + h)
            k.I("v_add_u32", tt, 4 * ks + 2 * h, v(t1))
            k.I("v_xor_b32", tt, tt, v(t2))
            k.I("v_lshl_add_u32", tt, tt, 4, v(t0))
    wa = R.a(); vt["wa"] = wa
    k.I("v_lshrrev_b32", v(t0), 2, v(vi))
    k.I("v_lshl_add_u32", v(t0), v(vg), 2, v(t0))
    k.I("v_mul_u32_u24", v(t0), 288, v(t0))
    k.I("v_and_b32", v(t1), 3, v(vi))
    k.I("v_lshl_add_u32", v(t0), v(t1), 3, v(t0))
    k.I("v_add_u32", v(wa), WBASE, v(t0))
    vt["acc"] = R.a(72, 4)
    vt["fx"] = R.a(16, 4)
    vt["fw"] = R.a(72, 4)
    acc = vt["acc"]
    tmp = vt["fw"]

    lab_v = k.newlabel("vpath")
    lab_end = k.newlabel("gend")
    k.I("s_cmp_ge_u32", s(S_NT), 8)
    k.I("s_cbranch_scc1", lab_v)
    gemm_mainloop(k, R, "NS", 9, 1152, 3456, vt)
    k.I("s_barrier")
    k.I("s_cmp_lt_u32", s(S_NT), 4)
    k.I("s_cselect_b32", s(S_C0), f32bits(QSCALE), f32bits(1.0))
    k.I("s_cselect_b32", s(S_C1), 0, "0x3F803F80")
    rb = t0
    k.I("v_lshlrev_b32", v(rb), 5, s(S_WAVE))
    k.I("v_add_u32", v(rb), v(rb), v(vi))
    k.I("v_mul_u32_u24", v(rb), 400, v(rb))
    for t in range(9):
        for j in range(2):
            nreg = t1
            k.I("v_lshlrev_b32", v(nreg), 2, v(vg))
            k.I("v_add_u32", v(nreg), 16 * t + 2 * j, v(nreg))
            k.I("v_mul_u32_u24", v(t2), 57, v(nreg))
            k.I("v_lshrrev_b32", v(t2), 10, v(t2))
            k.I("v_mul_u32_u24", v(t2), 12, v(t2))
            k.I("v_lshl_add_u32", v(t2), v(nreg), 1, v(t2))
            k.I("v_add_u32", v(t2), v(t2), v(rb))
            for st in range(2):
                a = acc + (st * 9 + t) * 4 + 2 * j
                d = tmp + ((t * 2 + j) * 2 + st) % 32
                k.I("v_mul_f32", v(a), s(S_C0), v(a))
                k.I("v_mul_f32", v(a + 1), s(S_C0), v(a + 1))
                k.I("v_cvt_pk_bf16_f32", v(d), v(a), v(a + 1))
                k.I("ds_write_b32", v(t2), v(d), mods="offset:%d" % (st * 6400))
    k.I("v_and_b32", v(t1), 127, "v0")
    k.I("v_mul_u32_u24", v(t1), 400, v(t1))
    k.I("v_lshrrev_b32", v(t2), 7, "v0")
    k.I("v_mul_u32_u24", v(t2), 48, v(t2))
    k.I("v_add_u32", v(t1), v(t1), v(t2))
    k.I("v_mov_b32", v(tmp), s(S_C1))
    k.I("v_mov_b32", v(tmp + 1), 0)
    for i in range(4):
        k.I("ds_write_b32", v(t1), v(tmp), mods="offset:%d" % (36 + 96 * i))
        k.I("ds_write_b32", v(t1), v(tmp + 1), mods="offset:%d" % (40 + 96 * i))
        k.I("ds_write_b32", v(t1), v(tmp + 1), mods="offset:%d" % (44 + 96 * i))
    k.wait(lgkm=0)
    k.I("s_barrier")
    k.I("s_and_b32", s(S_H0), s(S_NT), 3)
    k.I("s_lshl_b32", s(S_H0), s(S_H0), 3)
    lab_k = k.newlabel("kpath")
    k.I("s_cmp_ge_u32", s(S_NT), 4)
    k.I("s_cbranch_scc1", lab_k)
    k.I("v_lshrrev_b32", v(t0), 2, "v0")
    k.I("v_and_b32", v(t1), 3, "v0")
    k.I("v_mul_u32_u24", v(t2), 400, v(t0))
    k.I("v_lshl_add_u32", v(t2), v(t1), 4, v(t2))
    k.I("v_lshlrev_b32", v(t0), 6, v(t0))
    k.I("v_lshl_add_u32", v(t0), v(t1), 4, v(t0))
    k.I("v_cmp_eq_u32", "vcc", 3, v(t1))
    k.I("s_lshl_b32", s(S_T0), s(S_H0), 11)
    k.I("s_add_u32", s(S_T0), s(S_T0), s(S_S0))
    k.I("s_lshl_b32", s(S_T0), s(S_T0), 6)
    k.I("s_add_u32", s(S_T0), s(S_T0), LY.QP_OFF)
    for it in range(16):
        hl, half = it >> 1, it & 1
        d = tmp + (it % 4) * 4
        k.I("ds_read_b128", vr(d, 4), v(t2), mods="offset:%d" % (half * 64 * 400 + hl * 48))
        for r in range(4):
            k.I("v_cndmask_b32", v(d + r), v(d + r), 0, "vcc") if False else k.I("v_cndmask_b32", v(d + r), v(d + r), "0", "vcc")
        k.I("s_add_u32", s(S_T1), s(S_T0), hl * 2048 * 64 + half * 64 * 64)
        k.I("buffer_store_dwordx4", vr(d, 4), v(t0), sr(S_WS, 4), s(S_T1), mods="offen")
    k.I("s_branch", lab_end)
    k.L(lab_k)
    k.I("s_lshr_b32", s(S_T0), s(S_S0), 8)
    k.I("s_lshl_b32", s(S_T1), s(S_H0), 3)
    k.I("s_add_u32", s(S_T0), s(S_T0), s(S_T1))
    k.I("s_mul_i32", s(S_T0), s(S_T0), LY.KVREC)
    k.I("s_and_b32", s(S_T1), s(S_S0), 255)
    k.I("s_mul_i32", s(S_T1), s(S_T1), 48)
    k.I("s_add_u32", s(S_T0), s(S_T0), s(S_T1))
    k.I("s_add_u32", s(S_T0), s(S_T0), LY.KV_OFF)
    la = [R.a() for _ in range(3)]
    ga = [R.a() for _ in range(3)]
    for j in range(3):
        k.I("v_add_u32", v(t0), 256 * j, "v0")
        k.I("v_cmp_le_u32", "vcc", 384, v(t0))
        k.I("v_cndmask_b32", v(t1), 0, 1, "vcc")
        k.I("v_mul_u32_u24", v(t2), 384, v(t1))
        k.I("v_sub_u32", v(t0), v(t0), v(t2))
        k.I("v_mul_u32_u24", v(t2), 171, v(t0))
        k.I("v_lshrrev_b32", v(t2), 9, v(t2))
        k.I("v_mul_u32_u24", v(la[j]), 400, v(t2))
        k.I("v_mul_u32_u24", v(t2), 3, v(t2))
        k.I("v_sub_u32", v(t2), v(t0), v(t2))
        k.I("v_lshl_add_u32", v(la[j]), v(t2), 4, v(la[j]))
        k.I("v_mul_u32_u24", v(t2), 48, v(t1))
        k.I("v_add_u32", v(la[j]), v(la[j]), v(t2))
        k.I("s_mov_b32", s(S_T1), 8 * LY.KVREC)
        k.I("v_mul_lo_u32", v(ga[j]), v(t1), s(S_T1))
        k.I("v_lshl_add_u32", v(ga[j]), v(t0), 4, v(ga[j]))
    for hp2 in range(4):
        for j in range(3):
            d = tmp + ((hp2 * 3 + j) % 4) * 4
            k.I("ds_read_b128", vr(d, 4), v(la[j]), mods="offset:%d" % (hp2 * 96))
            k.I("s_add_u32", s(S_T1), s(S_T0), hp2 * 2 * 8 * LY.KVREC)
            k.I("buffer_store_dwordx4", vr(d, 4), v(ga[j]), sr(S_WS, 4), s(S_T1), mods="offen")
    k.I("s_branch", lab_end)

    k.L(lab_v)
    gemm_mainloop(k, R, "SN", 9, 1152, 3456, vt)
    k.I("s_barrier")
    VP = 272
    k.I("v_and_b32", v(t0), 1, v(vg))
    k.I("v_lshlrev_b32", v(t0), 3, v(t0))
    k.I("v_and_b32", v(t1), 2, v(vg))
    k.I("v_lshl_add_u32", v(t0), v(t1), 1, v(t0))
    k.I("v_lshl_add_u32", v(t0), s(S_WAVE), 5, v(t0))
    k.I("v_lshlrev_b32", v(t0), 1, v(t0))
    k.I("v_mul_u32_u24", v(t1), VP, v(vi))
    k.I("v_add_u32", v(t0), v(t0), v(t1))
    for st in range(2):
        for t in range(9):
            a = acc + (st * 9 + t) * 4
            d = tmp + ((st * 9 + t) % 16) * 2
            k.I("v_cvt_pk_bf16_f32", v(d), v(a), v(a + 1))
            k.I("v_cvt_pk_bf16_f32", v(d + 1), v(a + 2), v(a + 3))
            k.I("ds_write_b64", v(t0), vr(d, 2), mods="offset:%d" % (t * 16 * VP + st * 32))
    k.wait(lgkm=0)
    k.I("s_barrier")
    k.I("s_and_b32", s(S_H0), s(S_NT), 3)
    k.I("s_lshl_b32", s(S_H0), s(S_H0), 3)
    k.I("s_lshr_b32", s(S_T0), s(S_S0), 8)
    k.I("s_lshl_b32", s(S_T1), s(S_H0), 3)
    k.I("s_add_u32", s(S_T0), s(S_T0), s(S_T1))
    k.I("s_mul_i32", s(S_T0), s(S_T0), LY.KVREC)
    k.I("s_and_b32", s(S_T1), s(S_S0), 255)
    k.I("s_lshl_b32", s(S_T1), s(S_T1), 1)
    k.I("s_add_u32", s(S_T0), s(S_T0), s(S_T1))
    k.I("s_add_u32", s(S_T0), s(S_T0), LY.KV_OFF + LY.KPART)
    k.I("v_lshrrev_b32", v(t0), 4, "v0")
    k.I("v_and_b32", v(t1), 15, "v0")
    k.I("v_lshlrev_b32", v(t1), 4, v(t1))
    k.I("s_mov_b32", s(S_T2), 8 * LY.KVREC)
    for it in range(9):
        d = tmp + (it % 4) * 4
        la_, ga_ = tmp + 16, tmp + 17
        k.I("v_add_u32", v(t2), 16 * it, v(t0))
        k.I("v_mul_u32_u24", v(la_), VP, v(t2))
        k.I("v_add_u32", v(la_), v(la_), v(t1))
        k.I("ds_read_b128", vr(d, 4), v(la_))
        k.I("v_mul_u32_u24", v(ga_), 57, v(t2))
        k.I("v_lshrrev_b32", v(ga_), 10, v(ga_))
        k.I("v_mul_u32_u24", v(la_), 18, v(ga_))
        k.I("v_sub_u32", v(t2), v(t2), v(la_))
        k.I("v_mul_lo_u32", v(ga_), v(ga_), s(S_T2))
        k.I("v_mul_u32_u24", v(t2), LY.VPITCH, v(t2))
        k.I("v_add_u32", v(ga_), v(ga_), v(t2))
        k.I("v_add_u32", v(ga_), v(ga_), v(t1))
        k.I("buffer_store_dwordx4", vr(d, 4), v(ga_), sr(S_WS, 4), s(S_T0), mods="offen")
    k.I("v_cmp_gt_u32", "vcc", 128, "v0")
    k.I("s_and_saveexec_b64", sr(S_SAVE, 2), "vcc")
    k.I("v_mul_lo_u32", v(t2), v(t0), s(S_T2))
    k.I("v_add_u32", v(t2), 18 * LY.VPITCH, v(t2))
    k.I("v_add_u32", v(t2), v(t2), v(t1))
    for r in range(4):
        k.I("v_mov_b32", v(tmp + r), "0x3F803F80")
    k.I("buffer_store_dwordx4", vr(tmp, 4), v(t2), sr(S_WS, 4), s(S_T0), mods="offen")
    k.I("s_mov_b64", "exec", sr(S_SAVE, 2))
    k.L(lab_end)
    k.wait(vm=0)
    k.I("s_endpgm")


INV2PI = 0.15915494309189535


def bf16_round_f32(k, dst, src, tmp):
    k.I("v_cvt_pk_bf16_f32", v(tmp), v(src), v(src))
    k.I("v_lshlrev_b32", v(dst), 16, v(tmp))


def role_gate(k):
    R = RA(1)
    k.C("---- role: gate ----")
    vl = R.a(); t0 = R.a(); t1 = R.a(); t2 = R.a()
    gw = R.a(9); xv = R.a(9); accv = R.a(); res = R.a()
    k.I("v_and_b32", v(vl), 63, "v0")
    k.I("v_lshrrev_b32", v(t0), 6, "v0")
    k.I("v_readfirstlane_b32", s(S_WAVE), v(t0))
    k.I("v_lshlrev_b32", v(t0), 1, v(vl))
    for j in range(9):
        k.I("buffer_load_ushort", v(gw + j), v(t0), sr(S_W, 4), 0, mods="offen offset:%d" % (128 * j))
    k.I("s_sub_u32", s(S_T0), "s2", 1056)
    k.I("s_lshl_b32", s(S_T0), s(S_T0), 5)
    k.I("s_lshl_b32", s(S_T1), s(S_WAVE), 3)
    k.I("s_add_u32", s(S_T0), s(S_T0), s(S_T1))
    k.I("s_mul_i32", s(S_T2), s(S_T0), 1152)
    k.I("v_mov_b32", v(res), 0)
    for j in range(9):
        k.I("v_lshlrev_b32", v(gw + j), 16, v(gw + j))
    for r in range(8):
        for j in range(9):
            k.I("buffer_load_ushort", v(xv + j), v(t0), sr(S_X, 4), s(S_T2), mods="offen offset:%d" % (128 * j))
        k.I("s_add_u32", s(S_T2), s(S_T2), 1152)
        k.I("v_mov_b32", v(accv), 0)
        for j in range(9):
            k.I("v_lshlrev_b32", v(t1), 16, v(xv + j))
            k.I("v_mul_f32", v(t1), v(t1), v(gw + j))
            k.I("v_cvt_pk_bf16_f32", v(t1), v(t1), v(t1))
            k.I("v_lshlrev_b32", v(t1), 16, v(t1))
            k.I("v_add_f32", v(accv), v(accv), v(t1))
        k.I("v_add_f32", v(accv), v(accv), v(accv), mods="quad_perm:[1,0,3,2] row_mask:0xf bank_mask:0xf")
        k.I("v_add_f32", v(accv), v(accv), v(accv), mods="quad_perm:[2,3,0,1] row_mask:0xf bank_mask:0xf")
        k.I("v_add_f32", v(accv), v(accv), v(accv), mods="row_half_mirror row_mask:0xf bank_mask:0xf")
        k.I("v_add_f32", v(accv), v(accv), v(accv), mods="row_mirror row_mask:0xf bank_mask:0xf")
        k.I("v_readlane_b32", s(S_T1), v(accv), 0)
        k.I("v_readlane_b32", s(S_T3), v(accv), 16)
        k.I("v_readlane_b32", s(S_C0), v(accv), 32)
        k.I("v_readlane_b32", s(S_C1), v(accv), 48)
        k.I("v_mov_b32", v(t1), s(S_T1))
        k.I("v_add_f32", v(t1), s(S_T3), v(t1))
        k.I("v_add_f32", v(t1), s(S_C0), v(t1))
        k.I("v_add_f32", v(t1), s(S_C1), v(t1))
        k.I("v_cmp_eq_u32", "vcc", r, v(vl))
        k.I("v_cndmask_b32", v(res), v(res), v(t1), "vcc")
    bf16_round_f32(k, res, res, t1)
    k.I("v_mul_f32", v(t1), f32bits(-LOG2E), v(res))
    k.I("v_exp_f32", v(t1), v(t1))
    k.I("v_add_f32", v(t1), 1.0, v(t1))
    k.I("v_rcp_f32", v(t1), v(t1))
    bf16_round_f32(k, t1, t1, t2)
    k.I("v_cmp_gt_u32", "vcc", 8, v(vl))
    k.I("s_and_saveexec_b64", sr(S_SAVE, 2), "vcc")
    k.I("s_lshl_b32", s(S_T0), s(S_T0), 2)
    k.I("s_add_u32", s(S_T0), s(S_T0), LY.G_OFF)
    k.I("v_lshlrev_b32", v(t2), 2, v(vl))
    k.I("buffer_store_dword", v(t1), v(t2), sr(S_WS, 4), s(S_T0), mods="offen")
    k.I("s_mov_b64", "exec", sr(S_SAVE, 2))
    k.I("s_endpgm")


def role_xt(k):
    R = RA(1)
    k.C("---- role: x transpose ----")
    P = 144
    vl = R.a(); vi = R.a(); vg = R.a(); t0 = R.a(); t1 = R.a(); t2 = R.a()
    d0 = R.a(8, 4)
    k.I("v_and_b32", v(vl), 63, "v0")
    k.I("v_and_b32", v(vi), 15, "v0")
    k.I("v_lshrrev_b32", v(vg), 4, v(vl))
    k.I("v_lshrrev_b32", v(t0), 6, "v0")
    k.I("v_readfirstlane_b32", s(S_WAVE), v(t0))
    k.I("s_sub_u32", s(S_T0), "s2", 768)
    k.I("s_and_b32", s(S_MT), s(S_T0), 31)
    k.I("s_lshr_b32", s(S_NT), s(S_T0), 5)
    k.I("v_lshrrev_b32", v(t0), 3, "v0")
    k.I("v_and_b32", v(t1), 7, "v0")
    k.I("v_mul_u32_u24", v(t2), 1152, v(t0))
    k.I("v_lshl_add_u32", v(t2), v(t1), 4, v(t2))
    k.I("s_mul_i32", s(S_T1), s(S_MT), 64 * 1152)
    k.I("s_lshl_b32", s(S_T2), s(S_NT), 7)
    k.I("s_add_u32", s(S_T1), s(S_T1), s(S_T2))
    k.I("s_add_u32", s(S_T2), s(S_T1), 32 * 1152)
    k.I("buffer_load_dwordx4", vr(d0, 4), v(t2), sr(S_X, 4), s(S_T1), mods="offen")
    k.I("buffer_load_dwordx4", vr(d0 + 4, 4), v(t2), sr(S_X, 4), s(S_T2), mods="offen")
    k.I("v_mul_u32_u24", v(t0), P, v(t0))
    k.I("v_lshl_add_u32", v(t0), v(t1), 4, v(t0))
    k.I("ds_write_b128", v(t0), vr(d0, 4))
    k.I("ds_write_b128", v(t0), vr(d0 + 4, 4), mods="offset:%d" % (32 * P))
    k.wait(lgkm=0)
    k.I("s_barrier")
    k.I("v_lshrrev_b32", v(t0), 2, v(vi))
    k.I("v_lshl_add_u32", v(t0), v(vg), 3, v(t0))
    k.I("v_mul_u32_u24", v(t0), P, v(t0))
    k.I("v_and_b32", v(t1), 3, v(vi))
    k.I("v_lshl_add_u32", v(t0), v(t1), 3, v(t0))
    k.I("s_lshl_b32", s(S_T1), s(S_WAVE), 5)
    k.I("v_add_u32", v(t0), s(S_T1), v(t0))
    for half in range(2):
        for q in range(2):
            k.I("ds_read_b64_tr_b16", vr(d0 + half * 4 + q * 2, 2), v(t0), mods="offset:%d" % ((32 * half + 4 * q) * P))
    k.I("v_lshlrev_b32", v(t1), 12, v(vi))
    k.I("v_lshl_add_u32", v(t1), v(vg), 4, v(t1))
    k.I("s_lshl_b32", s(S_T1), s(S_NT), 6)
    k.I("s_lshl_b32", s(S_T2), s(S_WAVE), 4)
    k.I("s_add_u32", s(S_T1), s(S_T1), s(S_T2))
    k.I("s_lshl_b32", s(S_T1), s(S_T1), 12)
    k.I("s_lshl_b32", s(S_T2), s(S_MT), 7)
    k.I("s_add_u32", s(S_T1), s(S_T1), s(S_T2))
    k.I("s_add_u32", s(S_T1), s(S_T1), LY.XT_OFF)
    k.I("buffer_store_dwordx4", vr(d0, 4), v(t1), sr(S_WS, 4), s(S_T1), mods="offen")
    k.I("buffer_store_dwordx4", vr(d0 + 4, 4), v(t1), sr(S_WS, 4), s(S_T1), mods="offen offset:64")
    k.I("s_endpgm")


def role_kgen(k):
    R = RA(1)
    k.C("---- role: S4D kernel table generation ----")
    vl = R.a(); vi = R.a(); vg = R.a()
    t = [R.a() for _ in range(12)]
    prm = R.a(4, 4)
    pc = R.a(); pf = R.a()
    acc = R.a(4, 4)
    Ah = R.a(4, 4); Al = R.a(4, 4); Bh = R.a(4, 4); Bl = R.a(4, 4)
    k.I("v_and_b32", v(vl), 63, "v0")
    k.I("v_and_b32", v(vi), 15, "v0")
    k.I("v_lshrrev_b32", v(vg), 4, v(vl))
    k.I("v_lshrrev_b32", v(t[0]), 6, "v0")
    k.I("v_readfirstlane_b32", s(S_WAVE), v(t[0]))
    k.I("s_sub_u32", s(S_MT), "s2", 192)
    k.I("v_and_b32", v(t[0]), 127, "v0")
    k.I("v_lshlrev_b32", v(t[0]), 1, v(t[0]))
    k.I("s_lshl_b32", s(S_T0), s(S_MT), 8)
    for j, srd in enumerate((44, 48, 52, 56)):
        k.I("buffer_load_ushort", v(t[1 + j]), v(t[0]), sr(srd, 4), s(S_T0), mods="offen")
    k.I("s_lshl_b32", s(S_T1), s(S_MT), 1)
    k.I("v_mov_b32", v(t[5]), 0)
    k.I("buffer_load_ushort", v(t[5]), v(t[5]), sr(60, 4), s(S_T1), mods="offen")
    for j in range(1, 6):
        k.I("v_lshlrev_b32", v(t[j]), 16, v(t[j]))
    k.I("v_mul_f32", v(t[5]), f32bits(LOG2E), v(t[5]))
    k.I("v_exp_f32", v(t[5]), v(t[5]))
    bf16_round_f32(k, t[5], t[5], t[6])
    k.I("v_mul_f32", v(t[1]), f32bits(LOG2E), v(t[1]))
    k.I("v_exp_f32", v(t[1]), v(t[1]))
    bf16_round_f32(k, t[1], t[1], t[6])
    k.I("v_mul_f32", v(prm), v(t[1]), v(t[5]))
    k.I("v_mul_f32", v(prm), f32bits(-LOG2E), v(prm))
    k.I("v_mul_f32", v(prm + 1), v(t[2]), v(t[5]))
    k.I("v_mul_f32", v(prm + 1), f32bits(INV2PI), v(prm + 1))
    k.I("v_mul_f32", v(prm + 2), v(t[3]), v(t[5]))
    k.I("v_add_f32", v(prm + 2), v(prm + 2), v(prm + 2))
    k.I("v_mul_f32", v(prm + 3), v(t[4]), v(t[5]))
    k.I("v_add_f32", v(prm + 3), v(prm + 3), v(prm + 3))
    k.I("v_lshlrev_b32", v(t[0]), 3, v(t[0]))
    k.I("ds_write_b128", v(t[0]), vr(prm, 4))
    k.wait(lgkm=0)
    k.I("s_barrier")
    k.I("s_lshl_b32", s(S_T0), 1, s(S_WAVE))
    k.I("s_lshl_b32", s(S_T1), 128, s(S_WAVE))
    k.I("s_cmp_eq_u32", s(S_WAVE), 0)
    k.I("s_cselect_b32", s(S_T1), 0, s(S_T1))
    k.I("v_mul_lo_u32", v(pf), v(vi), s(S_T0))
    k.I("v_lshlrev_b32", v(pc), 4, v(pf))
    k.I("v_add_u32", v(pc), s(S_T1), v(pc))
    k.I("v_cvt_f32_u32", v(pf), v(pf))
    k.I("v_cvt_f32_u32", v(pc), v(pc))
    for r in range(4):
        k.I("v_mov_b32", v(acc + r), 0)
    pa = R.a()
    k.I("v_lshlrev_b32", v(pa), 6, v(vg))
    P = [R.a(4, 4) for _ in range(4)]

    def cexp(pos, pr, er, ei, tm):
        k.I("v_mul_f32", v(er), v(pr), v(pos))
        k.I("v_exp_f32", v(er), v(er))
        k.I("v_mul_f32", v(tm), v(pr + 1), v(pos))
        k.I("v_fract_f32", v(tm), v(tm))
        k.I("v_sin_f32", v(ei), v(tm))
        k.I("v_cos_f32", v(tm), v(tm))
        k.I("v_mul_f32", v(ei), v(er), v(ei))
        k.I("v_mul_f32", v(er), v(er), v(tm))

    def split(hi, lo, a, b, ta, tb):
        k.I("v_cvt_pk_bf16_f32", v(hi), v(a), v(b))
        k.I("v_lshlrev_b32", v(ta), 16, v(hi))
        k.I("v_and_b32", v(tb), "0xffff0000", v(hi))
        k.I("v_sub_f32", v(ta), v(a), v(ta))
        k.I("v_sub_f32", v(tb), v(b), v(tb))
        k.I("v_cvt_pk_bf16_f32", v(lo), v(ta), v(tb))

    for m in range(8):
        for q in range(4):
            k.I("ds_read_b128", vr(P[q], 4), v(pa), mods="offset:%d" % ((16 * m + q) * 16))
        for q in range(4):
            pr = P[q]
            er, ei, tm, gr, gi = t[0], t[1], t[2], t[3], t[4]
            cexp(pc, pr, er, ei, tm)
            k.I("v_mul_f32", v(gr), v(pr + 2), v(er))
            k.I("v_fma_f32", v(gr), "-" + v(pr + 3), v(ei), v(gr))
            k.I("v_mul_f32", v(gi), v(pr + 2), v(ei))
            k.I("v_fma_f32", v(gi), v(pr + 3), v(er), v(gi))
            k.I("v_sub_f32", v(gi), 0, v(gi))
            split(Ah + q, Al + q, gr, gi, t[5], t[6])
            fr, fi = t[7], t[8]
            cexp(pf, pr, fr, fi, t[9])
            split(Bh + q, Bl + q, fr, fi, t[10], t[11])
        k.I("v_mfma_f32_16x16x32_bf16", vr(acc, 4), vr(Ah, 4), vr(Bh, 4), vr(acc, 4))
        k.I("v_mfma_f32_16x16x32_bf16", vr(acc, 4), vr(Ah, 4), vr(Bl, 4), vr(acc, 4))
        k.I("v_mfma_f32_16x16x32_bf16", vr(acc, 4), vr(Al, 4), vr(Bh, 4), vr(acc, 4))
    TB = 2048
    k.I("s_lshl_b32", s(S_T0), s(S_WAVE), 7)
    k.I("s_add_u32", s(S_T0), s(S_T0), 128)
    k.I("s_cmp_eq_u32", s(S_WAVE), 0)
    k.I("s_cselect_b32", s(S_T0), 0, s(S_T0))
    k.I("s_lshl_b32", s(S_T0), s(S_T0), 2)
    k.I("v_lshlrev_b32", v(t[0]), 8, v(vg))
    k.I("v_lshl_add_u32", v(t[0]), v(vi), 2, v(t[0]))
    k.I("v_add_u32", v(t[0]), s(S_T0), v(t[0]))
    k.I("s_cmp_eq_u32", s(S_WAVE), 0)
    k.I("s_cselect_b32", s(S_T2), 4, 2)
    k.I("s_cmp_eq_u32", s(S_WAVE), 3)
    k.I("s_cselect_b32", s(S_T2), 3, s(S_T2))
    k.I("v_cmp_gt_u32", "vcc", s(S_T2), v(vg))
    k.I("s_and_saveexec_b64", sr(S_SAVE, 2), "vcc")
    for r in range(4):
        k.I("ds_write_b32", v(t[0]), v(acc + r), mods="offset:%d" % (TB + 64 * r))
    k.I("s_mov_b64", "exec", sr(S_SAVE, 2))
    k.wait(lgkm=0)
    k.I("s_barrier")
    w = R.a(9)
    E = R.a(4, 4); OD = R.a(4, 4)
    k.I("v_lshlrev_b32", v(t[0]), 3, "v0")
    k.I("v_sub_u32", v(t[0]), 2047, v(t[0]))
    for j in range(9):
        k.I("v_subrev_u32", v(t[1]), j, v(t[0]))
        if j == 8:
            k.I("v_max_i32", v(t[1]), 0, v(t[1]))
        k.I("v_cvt_f32_u32", v(t[3]), v(t[1]))
        k.I("v_cvt_pk_bf16_f32", v(t[3]), v(t[3]), v(t[3]))
        k.I("v_and_b32", v(t[3]), "0xffff", v(t[3]))
        k.I("v_subrev_u32", v(t[3]), 17024, v(t[3]))
        k.I("v_cmp_gt_u32", "vcc", 256, v(t[1]))
        k.I("v_cndmask_b32", v(t[3]), v(t[3]), v(t[1]), "vcc")
        k.I("v_lshlrev_b32", v(t[3]), 2, v(t[3]))
        k.I("ds_read_b32", v(w + j), v(t[3]), mods="offset:%d" % TB)
    k.I("v_cmp_gt_u32", "vcc", 8, v(t[0]))
    k.I("v_cndmask_b32", v(w + 8), v(w + 8), 0, "vcc")
    for i in range(4):
        k.I("v_cvt_pk_bf16_f32", v(E + i), v(w + 2 * i), v(w + 2 * i + 1))
        k.I("v_cvt_pk_bf16_f32", v(OD + i), v(w + 2 * i + 1), v(w + 2 * i + 2))
    k.I("s_mul_i32", s(S_T0), s(S_MT), LY.KRP)
    k.I("s_add_u32", s(S_T0), s(S_T0), LY.KR_OFF)
    k.I("v_lshlrev_b32", v(t[1]), 4, "v0")
    k.I("buffer_store_dwordx4", vr(E, 4), v(t[1]), sr(S_WS, 4), s(S_T0), mods="offen")
    k.I("s_add_u32", s(S_T1), s(S_T0), LY.KRV)
    k.I("buffer_store_dwordx4", vr(OD, 4), v(t[1]), sr(S_WS, 4), s(S_T1), mods="offen")
    for r in range(4):
        k.I("v_mov_b32", v(Ah + r), 0)
    k.I("v_mul_u32_u24", v(t[1]), LY.KRV, "v0")
    k.I("v_cmp_gt_u32", "vcc", 2, "v0")
    k.I("s_and_saveexec_b64", sr(S_SAVE, 2), "vcc")
    k.I("s_add_u32", s(S_T1), s(S_T0), 4096)
    k.I("buffer_store_dwordx4", vr(Ah, 4), v(t[1]), sr(S_WS, 4), s(S_T1), mods="offen")
    k.I("s_mov_b64", "exec", sr(S_SAVE, 2))
    k.I("s_endpgm")


def build_k1():
    k = Kernel("k1_kernel")
    prologue_ptrs(k, [(4, 0), (6, 8), (8, 104)])
    lab_kgen = k.newlabel("kgen")
    lab_xt = k.newlabel("xt")
    lab_gate = k.newlabel("gate")
    lab_exit = k.newlabel("exit")
    k.wait(lgkm=0)
    make_srd(k, S_X, 4, LY.S * LY.D * 2)
    make_srd(k, S_WS, 8, LY.WS_USED)
    k.I("s_cmp_ge_u32", "s2", 1120)
    k.I("s_cbranch_scc1", lab_exit)
    k.I("s_cmp_ge_u32", "s2", 1056)
    k.I("s_cbranch_scc1", lab_gate)
    k.I("s_cmp_ge_u32", "s2", 768)
    k.I("s_cbranch_scc1", lab_xt)
    k.I("s_cmp_ge_u32", "s2", 192)
    k.I("s_cbranch_scc1", lab_kgen)
    make_srd(k, S_W, 6, 576 * 1728 * 2)
    role_gemm1(k)
    k.L(lab_kgen)
    prologue_ptrs(k, [(44, 32), (48, 40), (52, 48), (56, 56), (60, 64)])
    k.wait(lgkm=0)
    for sd in (44, 48, 52, 56):
        k.I("s_mov_b32", s(sd + 2), 576 * 128 * 2)
        k.I("s_mov_b32", s(sd + 3), "0x00020000")
    k.I("s_mov_b32", s(62), 576 * 2)
    k.I("s_mov_b32", s(63), "0x00020000")
    role_kgen(k)
    k.L(lab_xt)
    role_xt(k)
    k.L(lab_gate)
    prologue_ptrs(k, [(4, 80)])
    k.wait(lgkm=0)
    make_srd(k, S_W, 4, 576 * 2)
    role_gate(k)
    k.L(lab_exit)
    k.I("s_endpgm")
    return k, dict(grid=1120, block=256, lds=LDS_K1)
```

```python
from asmlib import *
import layout as LY
from k1 import RA, f32bits, make_srd, prologue_ptrs

S_WS = 12
S_WAVE = 16
S_HEAD = 17
S_QT = 18
S_T0, S_T1, S_T2, S_T3 = 19, 20, 21, 22
S_BUF = 23
S_KVOFF = 24
S_CNT = 25
S_DELTA = 26
S_SAVE = 28
S_SAVE2 = 30

THR = 8.0
KVB = LY.KVREC


import os
EXPF = os.environ.get("EXPF", "")


def role_attn(k, prof=False):
    R = RA(1, 128)
    _I = k.I

    def kI(op, *a, **kw):
        if "noexp" in EXPF and op == "v_exp_f32":
            return None
        if "nocvt" in EXPF and op == "v_cvt_pk_bf16_f32":
            return None
        if "nomax" in EXPF and op in ("v_max3_f32",):
            return None
        if "nomfma" in EXPF and op.startswith("v_mfma"):
            return None
        if "nobr" in EXPF and op == "s_cbranch_vccnz":
            return None
        if "nolds" in EXPF and op.startswith("ds_read"):
            return None
        return _I(op, *a, **kw)
    k.I = kI
    k.C("---- role: attention ----")
    vl = R.a(); vq = R.a(); vh = R.a()
    t0 = R.a(); t1 = R.a(); t2 = R.a(); t3 = R.a()
    vdma = R.a(); ka = R.a(); va = R.a(); mneg = R.a()
    Q = R.a(8, 4)
    S2 = [R.a(16, 4), R.a(16, 4)]
    O = R.a(16, 4)
    KF = [R.a(8, 4), R.a(8, 4)]
    VF = [R.a(8, 4), R.a(8, 4)]
    P = R.a(8, 4)
    mx = R.a(8)
    if prof:
        vsr = R.a()
        k.stampv_init(vsr, 64)
        k.stampv("start")
    k.I("v_and_b32", v(vl), 63, "v0")
    k.I("v_and_b32", v(vq), 31, "v0")
    k.I("v_bfe_u32", v(vh), "v0", 5, 1)
    k.I("v_lshrrev_b32", v(t0), 6, "v0")
    k.I("v_readfirstlane_b32", s(S_WAVE), v(t0))
    k.I("s_and_b32", s(S_T0), "s2", 7)
    k.I("s_lshl_b32", s(S_T0), s(S_T0), 2)
    k.I("s_lshr_b32", s(S_T1), "s2", 3)
    k.I("s_and_b32", s(S_T1), s(S_T1), 3)
    k.I("s_add_u32", s(S_HEAD), s(S_T0), s(S_T1))
    k.I("s_lshr_b32", s(S_QT), "s2", 5)
    k.I("v_lshlrev_b32", v(vdma), 4, v(vl))
    k.I("s_lshl_b32", s(S_T0), s(S_WAVE), 10)
    k.I("v_add_u32", v(vdma), s(S_T0), v(vdma))
    k.I("s_mul_i32", s(S_KVOFF), s(S_HEAD), 8 * LY.KVREC)
    k.I("s_add_u32", s(S_KVOFF), s(S_KVOFF), LY.KV_OFF)
    k.I("s_mov_b32", s(S_BUF), s(S_T0))
    S_W1K = S_SAVE2
    k.I("s_mov_b32", s(S_W1K), s(S_T0))

    def issue_dma():
        for i in range(2):
            k.I("s_add_u32", "m0", s(S_BUF), i * 8192)
            k.I("s_add_u32", s(S_T1), s(S_KVOFF), i * 8192)
            k.I("buffer_load_dwordx4", v(vdma), sr(S_WS, 4), s(S_T1), mods="offen lds")
        lab = k.newlabel("skipd")
        k.I("s_cmp_ge_u32", s(S_WAVE), 6)
        k.I("s_cbranch_scc1", lab)
        k.I("s_add_u32", "m0", s(S_BUF), 2 * 8192)
        k.I("s_add_u32", s(S_T1), s(S_KVOFF), 2 * 8192)
        k.I("buffer_load_dwordx4", v(vdma), sr(S_WS, 4), s(S_T1), mods="offen lds")
        k.L(lab)
        k.I("s_add_u32", s(S_KVOFF), s(S_KVOFF), LY.KVREC)
        k.I("s_add_u32", s(S_BUF), s(S_BUF), KVB)
        k.I("s_add_u32", s(S_T1), s(S_W1K), 3 * KVB)
        k.I("s_cmp_ge_u32", s(S_BUF), s(S_T1))
        k.I("s_cselect_b32", s(S_BUF), s(S_W1K), s(S_BUF))

    issue_dma()
    issue_dma()
    k.I("s_lshl_b32", s(S_T0), s(S_HEAD), 11)
    k.I("s_lshl_b32", s(S_T1), s(S_QT), 8)
    k.I("s_add_u32", s(S_T0), s(S_T0), s(S_T1))
    k.I("s_lshl_b32", s(S_T1), s(S_WAVE), 5)
    k.I("s_add_u32", s(S_T0), s(S_T0), s(S_T1))
    k.I("s_lshl_b32", s(S_T0), s(S_T0), 6)
    k.I("s_add_u32", s(S_T0), s(S_T0), LY.QP_OFF)
    k.I("v_lshlrev_b32", v(t0), 6, v(vq))
    k.I("v_lshl_add_u32", v(t0), v(vh), 4, v(t0))
    k.I("buffer_load_dwordx4", vr(Q, 4), v(t0), sr(S_WS, 4), s(S_T0), mods="offen")
    k.I("buffer_load_dwordx4", vr(Q + 4, 4), v(t0), sr(S_WS, 4), s(S_T0), mods="offen offset:32")
    k.I("v_mul_u32_u24", v(ka), 48, v(vq))
    k.I("v_lshl_add_u32", v(ka), v(vh), 4, v(ka))
    k.I("v_mul_u32_u24", v(va), LY.VPITCH, v(vq))
    k.I("v_lshl_add_u32", v(va), v(vh), 4, v(va))
    k.I("v_add_u32", v(va), LY.KPART, v(va))
    for i in range(16):
        k.I("v_mov_b32", v(O + i), 0)
    k.wait(vm=0)
    k.I("s_barrier")

    def read_kf(dst, blk):
        k.I("ds_read_b128", vr(dst, 4), v(ka), mods="offset:%d" % (blk * 1536))
        k.I("ds_read_b128", vr(dst + 4, 4), v(ka), mods="offset:%d" % (blk * 1536 + 32))

    def read_vf(dst, blk):
        k.I("ds_read_b128", vr(dst, 4), v(va), mods="offset:%d" % (blk * 64))
        k.I("ds_read_b128", vr(dst + 4, 4), v(va), mods="offset:%d" % (blk * 64 + 32))

    def qk1(S, kf):
        k.I("v_mfma_f32_32x32x16_bf16", vr(S, 16), vr(kf, 4), vr(Q, 4), 0)

    def qk2(S, kf):
        k.I("v_mfma_f32_32x32x16_bf16", vr(S, 16), vr(kf + 4, 4), vr(Q + 4, 4), vr(S, 16))

    def maxtree(S):
        k.I("v_max3_f32", v(mx), v(S), v(S + 1), v(S + 2))
        k.I("v_max3_f32", v(mx + 1), v(S + 3), v(S + 4), v(S + 5))
        k.I("v_max3_f32", v(mx + 2), v(S + 6), v(S + 7), v(S + 8))
        k.I("v_max3_f32", v(mx + 3), v(S + 9), v(S + 10), v(S + 11))
        k.I("v_max3_f32", v(mx + 4), v(S + 12), v(S + 13), v(S + 14))
        k.I("v_max3_f32", v(mx), v(mx), v(mx + 1), v(S + 15))
        k.I("v_max3_f32", v(mx + 2), v(mx + 2), v(mx + 3), v(mx + 4))
        k.I("v_max_f32", v(mx), v(mx), v(mx + 2))

    def both_halves_max():
        k.I("v_mov_b32", v(mx + 1), v(mx))
        k.I("v_permlane32_swap_b32", v(mx), v(mx + 1))
        k.I("v_max_f32", v(mx), v(mx), v(mx + 1))

    def set_m(xr):
        k.I("v_cvt_pk_bf16_f32", v(t2), v(xr), v(xr))
        k.I("v_lshlrev_b32", v(t3), 16, v(t2))
        k.I("v_sub_f32", v(xr), v(xr), v(t3))
        k.I("v_cvt_pk_bf16_f32", v(t2), v(t3), v(xr))
        k.I("v_and_b32", v(xr), "0xffff0000", v(t2))
        k.I("v_add_f32", v(xr), v(xr), v(t3))
        k.I("v_cmp_eq_u32", "vcc", 0, v(vh))
        k.I("v_cndmask_b32", v(Q + 5), v(Q + 5), v(t2), "vcc")

    read_kf(KF[0], 0)
    read_kf(KF[1], 1)
    read_vf(VF[0], 0)
    qk1(S2[0], KF[0]); qk2(S2[0], KF[0])
    maxtree(S2[0])
    both_halves_max()
    k.I("v_sub_f32", v(mneg), 0, v(mx))
    set_m(mneg)
    qk1(S2[0], KF[0]); qk2(S2[0], KF[0])
    k.I("s_mov_b32", s(S_CNT), 0)
    k.I("s_mov_b32", s(S_DELTA), 0)

    lab_loop = k.newlabel("loop")
    lab_done = k.newlabel("done")
    slow = []
    k.L(lab_loop)
    k.stampv("loop top")
    for blk in range(8):
        cur = blk & 1
        S, Sn = S2[cur], S2[cur ^ 1]
        maxtree(S)
        k.I("v_cmp_lt_f32", "vcc", f32bits(THR), v(mx))
        ls, lb = k.newlabel("slow"), k.newlabel("back")
        slow.append((ls, lb, S))
        k.I("s_cbranch_vccnz", ls)
        k.L(lb)
        qk1(Sn, KF[cur ^ 1])
        for i in range(4):
            k.I("v_exp_f32", v(S + i), v(S + i))
        qk2(Sn, KF[cur ^ 1])
        if blk == 6:
            k.wait(vm=0)
            k.I("s_barrier")
            lskip = k.newlabel("nodma")
            k.I("s_cmp_ge_u32", s(S_CNT), 6)
            k.I("s_cbranch_scc1", lskip)
            issue_dma()
            k.L(lskip)
            k.I("s_add_u32", s(S_DELTA), s(S_DELTA), 1)
            k.I("s_cmp_ge_u32", s(S_DELTA), 3)
            k.I("s_cselect_b32", s(S_DELTA), 0, s(S_DELTA))
            k.I("s_mov_b32", s(S_T0), KVB)
            k.I("s_cselect_b32", s(S_T0), -2 * KVB, s(S_T0))
            k.I("v_add_u32", v(ka), s(S_T0), v(ka))
        if blk == 7:
            k.I("v_add_u32", v(va), s(S_T0), v(va))
        read_kf(KF[cur], (blk + 2) & 7)
        read_vf(VF[cur ^ 1], (blk + 1) & 7)
        for i in range(4, 8):
            k.I("v_exp_f32", v(S + i), v(S + i))
        for i in range(4):
            k.I("v_cvt_pk_bf16_f32", v(P + i), v(S + 2 * i), v(S + 2 * i + 1))
        for i in range(8, 12):
            k.I("v_exp_f32", v(S + i), v(S + i))
        k.I("v_mfma_f32_32x32x16_bf16", vr(O, 16), vr(VF[cur], 4), vr(P, 4), vr(O, 16))
        for i in range(12, 16):
            k.I("v_exp_f32", v(S + i), v(S + i))
        for i in range(4, 8):
            k.I("v_cvt_pk_bf16_f32", v(P + i), v(S + 2 * i), v(S + 2 * i + 1))
        k.I("v_mfma_f32_32x32x16_bf16", vr(O, 16), vr(VF[cur] + 4, 4), vr(P + 4, 4), vr(O, 16))
        if blk in (0, 1):
            k.stampv("blk %d" % blk)
    k.I("s_add_u32", s(S_CNT), s(S_CNT), 1)
    k.I("s_cmp_lt_u32", s(S_CNT), 8)
    k.I("s_cbranch_scc1", lab_loop)
    k.I("s_branch", lab_done)

    for (ls, lb, S) in slow:
        k.L(ls)
        both_halves_max()
        k.I("v_max_f32", v(mx), 0, v(mx))
        k.I("v_sub_f32", v(t1), v(mneg), v(mx))
        set_m(t1)
        k.I("v_sub_f32", v(mx), v(mneg), v(t1))
        k.I("v_mov_b32", v(mneg), v(t1))
        k.I("v_sub_f32", v(t0), 0, v(mx))
        k.I("v_exp_f32", v(t0), v(t0))
        for i in range(16):
            k.I("v_sub_f32", v(S + i), v(S + i), v(mx))
        for i in range(16):
            k.I("v_mul_f32", v(O + i), v(O + i), v(t0))
        k.I("s_branch", lb)

    k.L(lab_done)
    k.stampv("done")
    k.I("v_mov_b32", v(t0), v(O + 10))
    k.I("v_mov_b32", v(t1), v(O + 10))
    k.I("v_permlane32_swap_b32", v(t0), v(t1))
    k.I("v_rcp_f32", v(t0), v(t0))
    for i in range(10):
        k.I("v_mul_f32", v(O + i), v(O + i), v(t0))
    for i in range(5):
        k.I("v_cvt_pk_bf16_f32", v(P + i), v(O + 2 * i), v(O + 2 * i + 1))
    k.I("s_lshl_b32", s(S_T0), s(S_QT), 8)
    k.I("s_lshl_b32", s(S_T1), s(S_WAVE), 5)
    k.I("s_add_u32", s(S_T0), s(S_T0), s(S_T1))
    k.I("s_mul_i32", s(S_T0), s(S_T0), 1152)
    k.I("s_mul_i32", s(S_T1), s(S_HEAD), 36)
    k.I("s_add_u32", s(S_T0), s(S_T0), s(S_T1))
    k.I("s_add_u32", s(S_T0), s(S_T0), LY.O_OFF)
    k.I("v_mul_u32_u24", v(t1), 1152, v(vq))
    k.I("v_lshl_add_u32", v(t1), v(vh), 3, v(t1))
    for j, dd in enumerate((0, 2, 8, 10)):
        k.I("buffer_store_dword", v(P + j), v(t1), sr(S_WS, 4), s(S_T0), mods="offen offset:%d" % (dd * 2))
    k.I("v_cmp_eq_u32", "vcc", 0, v(vh))
    k.I("s_and_saveexec_b64", sr(S_SAVE, 2), "vcc")
    k.I("buffer_store_dword", v(P + 4), v(t1), sr(S_WS, 4), s(S_T0), mods="offen offset:32")
    k.I("s_mov_b64", "exec", sr(S_SAVE, 2))
    if prof:
        k.stampv("end")
        lx = k.newlabel("nodump")
        k.I("s_cmp_lg_u32", "s2", 100)
        k.I("s_cbranch_scc1", lx)
        k.I("s_cmp_lg_u32", s(S_WAVE), 0)
        k.I("s_cbranch_scc1", lx)
        k.stampv_dump(t0)
        k.L(lx)
    k.I("s_endpgm")


CS = 4416
UOFF = 8 * CS
PB = UOFF + 64 * 144
PSL = 528
PKQ = 16 * PSL
LDS_CONV = PB + 4 * PKQ
NCH = 4
S_CH = 17
S_DSK = 32
S_DS = 34
S_KR = 35
S_M0C = 36


def role_conv(k, prof=False):
    R = RA(1, 128)
    if prof:
        k.stamp_init(64)
    k.C("---- role: S4D conv ----")
    vl = R.a(); va_ = R.a(); vh = R.a()
    t = [R.a() for _ in range(8)]
    gl = R.a(4, 4)
    goff = R.a(); lwa = R.a(); vdma = R.a()
    acc = R.a(16, 4)
    AF = [R.a(4, 4) for _ in range(4)]
    BF = [R.a(4, 4) for _ in range(4)]
    VA = R.a(); VB = R.a()
    w = R.a(8, 4)
    E = R.a(4, 4); OD = R.a(4, 4); TQ = R.a(4, 4)
    pwa = R.a(); pra = R.a(); ura = R.a(); vst = R.a()
    k.I("v_and_b32", v(vl), 63, "v0")
    k.I("v_and_b32", v(va_), 31, "v0")
    k.I("v_bfe_u32", v(vh), "v0", 5, 1)
    k.I("v_lshrrev_b32", v(t[0]), 6, "v0")
    k.I("v_readfirstlane_b32", s(S_WAVE), v(t[0]))
    k.I("s_sub_u32", s(S_T0), "s2", 256)
    k.I("s_lshl_b32", s(S_CH), s(S_T0), 2)
    k.I("s_lshl_b32", s(S_T1), s(S_T0), 3)
    k.I("s_load_dwordx2", sr(S_DSK, 2), "s[4:5]", s(S_T1))
    k.I("v_lshlrev_b32", v(vdma), 4, v(vl))
    k.I("s_mul_i32", s(S_KR), s(S_CH), LY.KRP)
    k.I("s_and_b32", s(S_T1), s(S_WAVE), 1)
    k.I("s_mul_i32", s(S_T1), s(S_T1), LY.KRV)
    k.I("s_add_u32", s(S_KR), s(S_KR), s(S_T1))
    k.I("s_lshr_b32", s(S_T1), s(S_WAVE), 1)
    k.I("s_lshl_b32", s(S_T1), s(S_T1), 2)
    k.I("s_add_u32", s(S_KR), s(S_KR), s(S_T1))
    k.I("s_add_u32", s(S_KR), s(S_KR), LY.KR_OFF)
    k.I("s_mul_i32", s(S_M0C), s(S_WAVE), CS)
    k.I("v_cmp_le_u32", "vcc", 256, "v0")
    k.I("s_mov_b64", sr(S_SAVE2, 2), "vcc")
    k.I("v_subrev_u32", v(t[0]), 256, "v0")
    k.I("v_lshrrev_b32", v(t[1]), 3, v(t[0]))
    k.I("v_mul_u32_u24", v(t[1]), 144, v(t[1]))
    k.I("v_and_b32", v(t[2]), 7, v(t[0]))
    k.I("v_lshl_add_u32", v(t[1]), v(t[2]), 4, v(t[1]))
    k.I("v_add_u32", v(lwa), UOFF + 32 * 144, v(t[1]))
    k.I("v_lshlrev_b32", v(t[1]), 4, v(t[0]))
    k.I("s_lshl_b32", s(S_T1), s(S_CH), 12)
    k.I("s_add_u32", s(S_T1), s(S_T1), LY.XT_OFF)
    k.I("v_add_u32", v(goff), s(S_T1), v(t[1]))

    def prefetch():
        for i in range(4):
            k.I("s_add_u32", "m0", s(S_M0C), i * 1024)
            k.I("s_add_u32", s(S_T1), s(S_KR), i * 1024)
            k.I("buffer_load_dwordx4", v(vdma), sr(S_WS, 4), s(S_T1), mods="offen lds")
        k.I("s_add_u32", s(S_KR), s(S_KR), LY.KRP)
        k.I("s_mov_b64", sr(S_SAVE, 2), "exec")
        k.I("s_mov_b64", "exec", sr(S_SAVE2, 2))
        k.I("buffer_load_dwordx4", vr(gl, 4), v(goff), sr(S_WS, 4), 0, mods="offen")
        k.I("v_add_u32", v(goff), 4096, v(goff))
        k.I("s_mov_b64", "exec", sr(S_SAVE, 2))

    prefetch()
    for r in range(4):
        k.I("v_mov_b32", v(TQ + r), 0)
    k.I("v_cmp_gt_u32", "vcc", 288, "v0")
    k.I("s_and_saveexec_b64", sr(S_SAVE, 2), "vcc")
    k.I("v_lshlrev_b32", v(t[0]), 4, "v0")
    k.I("ds_write_b128", v(t[0]), vr(TQ, 4), mods="offset:%d" % UOFF)
    k.I("s_mov_b64", "exec", sr(S_SAVE, 2))
    k.I("v_cmp_gt_u32", "vcc", 144, "v0")
    k.I("s_and_saveexec_b64", sr(S_SAVE, 2), "vcc")
    k.I("v_mul_u32_u24", v(t[0]), 57, "v0")
    k.I("v_lshrrev_b32", v(t[0]), 10, v(t[0]))
    k.I("v_mul_u32_u24", v(t[1]), 18, v(t[0]))
    k.I("v_sub_u32", v(t[1]), "v0", v(t[1]))
    k.I("v_mul_u32_u24", v(t[0]), CS, v(t[0]))
    k.I("v_lshl_add_u32", v(t[0]), v(t[1]), 4, v(t[0]))
    k.I("ds_write_b128", v(t[0]), vr(TQ, 4), mods="offset:4096")
    k.I("s_mov_b64", "exec", sr(S_SAVE, 2))
    k.I("s_and_b32", s(S_T0), s(S_WAVE), 1)
    k.I("s_lshr_b32", s(S_T1), s(S_WAVE), 1)
    k.I("v_sub_u32", v(t[0]), 2047, v(va_))
    k.I("v_and_b32", v(t[1]), 7, v(t[0]))
    k.I("v_mul_u32_u24", v(t[1]), CS, v(t[1]))
    k.I("v_lshrrev_b32", v(t[0]), 3, v(t[0]))
    k.I("v_add_u32", v(t[0]), v(t[0]), v(vh))
    k.I("s_lshl_b32", s(S_T2), s(S_T0), 2)
    k.I("s_lshl_b32", s(S_T3), s(S_T1), 3)
    k.I("s_add_u32", s(S_T2), s(S_T2), s(S_T3))
    k.I("s_add_u32", s(S_T2), s(S_T2), 224)
    k.I("v_subrev_u32", v(t[0]), s(S_T2), v(t[0]))
    k.I("v_lshl_add_u32", v(VA), v(t[0]), 4, v(t[1]))
    k.I("s_sub_u32", s(S_T2), 4, s(S_T1))
    k.I("v_add_u32", v(t[0]), s(S_T2), v(va_))
    k.I("v_mul_u32_u24", v(t[0]), 144, v(t[0]))
    k.I("v_lshl_add_u32", v(t[0]), v(vh), 4, v(t[0]))
    k.I("v_add_u32", v(VB), UOFF, v(t[0]))
    k.I("s_mul_i32", s(S_T2), s(S_T1), PKQ)
    k.I("s_mul_i32", s(S_T3), s(S_T0), 8 * PSL)
    k.I("s_add_u32", s(S_T2), s(S_T2), s(S_T3))
    k.I("s_add_u32", s(S_T2), s(S_T2), PB)
    k.I("v_mul_u32_u24", v(t[0]), PSL, v(vh))
    k.I("v_lshl_add_u32", v(t[0]), v(va_), 4, v(t[0]))
    k.I("v_add_u32", v(pwa), s(S_T2), v(t[0]))
    k.I("v_and_b32", v(t[0]), 15, v(vl))
    k.I("v_lshrrev_b32", v(t[1]), 4, v(vl))
    k.I("s_lshl_b32", s(S_T2), s(S_WAVE), 2)
    k.I("v_add_u32", v(t[1]), s(S_T2), v(t[1]))
    k.I("v_mul_u32_u24", v(t[2]), PSL, v(t[0]))
    k.I("v_lshl_add_u32", v(t[2]), v(t[1]), 4, v(t[2]))
    k.I("v_add_u32", v(pra), PB, v(t[2]))
    k.I("v_mul_u32_u24", v(t[2]), 144, v(t[1]))
    k.I("v_lshl_add_u32", v(t[2]), v(t[0]), 3, v(t[2]))
    k.I("v_add_u32", v(ura), UOFF + 32 * 144, v(t[2]))
    k.I("v_lshlrev_b32", v(vst), 3, v(vl))
    k.I("s_lshl_b32", s(S_T3), s(S_CH), 12)
    k.I("s_lshl_b32", s(S_T2), s(S_WAVE), 9)
    k.I("s_add_u32", s(S_T3), s(S_T3), s(S_T2))
    k.I("s_add_u32", s(S_T3), s(S_T3), LY.B_OFF)
    k.wait(lgkm=0)

    for c in range(NCH):
        k.stamp('c%d start' % c)
        k.wait(vm=0)
        k.I("s_mov_b64", sr(S_SAVE, 2), "exec")
        k.I("s_mov_b64", "exec", sr(S_SAVE2, 2))
        k.I("ds_write_b128", v(lwa), vr(gl, 4))
        k.I("s_mov_b64", "exec", sr(S_SAVE, 2))
        k.wait(lgkm=0)
        k.I("s_barrier")
        k.stamp('c%d after fill' % c)
        k.I("ds_read_b64", vr(E, 2), v(ura))
        for r in range(16):
            k.I("v_mov_b32", v(acc + r), 0)
        steps = [(j, ks) for j in range(8) for ks in range(4)]

        def rd(idx):
            j, ks = steps[idx]
            k.I("ds_read_b128", vr(AF[idx % 4], 4), v(VA), mods="offset:%d" % (512 * (7 - j) + 32 * ks))
            k.I("ds_read_b128", vr(BF[idx % 4], 4), v(VB), mods="offset:%d" % ((28 - 4 * j) * 144 + 32 * ks))
        for i in range(3):
            rd(i)
        for i in range(len(steps)):
            if i + 3 < len(steps):
                rd(i + 3)
            k.I("v_mfma_f32_32x32x16_bf16", vr(acc, 16), vr(AF[i % 4], 4), vr(BF[i % 4], 4), vr(acc, 16))
        k.stamp('c%d after mfma' % c)
        for g in range(4):
            k.I("ds_write_b128", v(pwa), vr(acc + 4 * g, 4), mods="offset:%d" % (2 * g * PSL))
        k.wait(lgkm=0)
        k.I("s_barrier")
        k.stamp('c%d after partials' % c)
        if c + 1 < NCH:
            prefetch()
        for q in range(4):
            k.I("ds_read_b128", vr(AF[q], 4), v(pra), mods="offset:%d" % (q * PKQ))
        if c == 0:
            k.wait(lgkm=0)
        if c % 2 == 0:
            k.I("s_lshl_b32", s(S_DS), s(S_DSK + c // 2), 16)
        else:
            k.I("s_and_b32", s(S_DS), s(S_DSK + c // 2), "0xffff0000")
        k.I("v_lshlrev_b32", v(w + 4), 16, v(E))
        k.I("v_and_b32", v(w + 5), "0xffff0000", v(E))
        k.I("v_lshlrev_b32", v(w + 6), 16, v(E + 1))
        k.I("v_and_b32", v(w + 7), "0xffff0000", v(E + 1))
        for i in range(4):
            k.I("v_mul_f32", v(w + 4 + i), s(S_DS), v(w + 4 + i))
        k.I("v_cvt_pk_bf16_f32", v(OD + 2), v(w + 4), v(w + 5))
        k.I("v_cvt_pk_bf16_f32", v(OD + 3), v(w + 6), v(w + 7))
        for i in range(4):
            k.I("v_add_f32", v(w + i), v(AF[0] + i), v(AF[1] + i))
            k.I("v_add_f32", v(w + 4 + i), v(AF[2] + i), v(AF[3] + i))
            k.I("v_add_f32", v(w + i), v(w + i), v(w + 4 + i))
        k.I("v_cvt_pk_bf16_f32", v(OD), v(w), v(w + 1))
        k.I("v_cvt_pk_bf16_f32", v(OD + 1), v(w + 2), v(w + 3))
        for i in range(2):
            k.I("v_lshlrev_b32", v(t[2]), 16, v(OD + i))
            k.I("v_lshlrev_b32", v(t[3]), 16, v(OD + 2 + i))
            k.I("v_add_f32", v(t[2]), v(t[2]), v(t[3]))
            k.I("v_and_b32", v(t[3]), "0xffff0000", v(OD + i))
            k.I("v_and_b32", v(t[4]), "0xffff0000", v(OD + 2 + i))
            k.I("v_add_f32", v(t[3]), v(t[3]), v(t[4]))
            k.I("v_cvt_pk_bf16_f32", v(TQ + i), v(t[2]), v(t[3]))
        k.I("buffer_store_dwordx2", vr(TQ, 2), v(vst), sr(S_WS, 4), s(S_T3), mods="offen")
        k.I("s_add_u32", s(S_T3), s(S_T3), 4096)
    k.stamp('end ch')
    if prof:
        k.wait(vm=0)
        k.stamp('stored')
        lx = k.newlabel("nodump")
        k.I("s_cmp_lg_u32", "s2", 300)
        k.I("s_cbranch_scc1", lx)
        k.I("s_cmp_lg_u32", s(S_WAVE), 0)
        k.I("s_cbranch_scc1", lx)
        k.stamp_dump(t[0], t[1])
        k.L(lx)
    k.I("s_endpgm")


def build_k2(conv_only=False, prof=False):
    k = Kernel("k2_kernel")
    prologue_ptrs(k, [(8, 104), (4, 72)])
    lab_exit = k.newlabel("exit")
    lab_conv = k.newlabel("conv")
    k.wait(lgkm=0)
    make_srd(k, S_WS, 8, LY.WS_USED)
    k.I("s_cmp_ge_u32", "s2", 256 + 144)
    k.I("s_cbranch_scc1", lab_exit)
    k.I("s_cmp_ge_u32", "s2", 256)
    k.I("s_cbranch_scc1", lab_conv)
    if conv_only:
        k.I("s_endpgm")
    _I0 = k.I
    role_attn(k, prof == 'attn')
    k.I = _I0
    k.L(lab_conv)
    role_conv(k, prof == 'conv')
    k.L(lab_exit)
    k.I("s_endpgm")
    return k, dict(grid=400, block=512, lds=max(LDS_CONV, 3 * KVB))
```

```python
from asmlib import *
import layout as LY
from k1 import RA, f32bits, make_srd, prologue_ptrs

S_X, S_W, S_WS, S_OUT = 12, 16, 20, 24
S_WAVE = 28
S_XK, S_WKOFF = 29, 30
S_M0X, S_M0W = 31, 32
S_MT, S_NT = 33, 34
S_T0, S_T1, S_T2, S_T3 = 35, 36, 37, 38
S_S0 = 39


def build_k3(NW=2, NT=6, NSTAGE=3):
    k = Kernel("k3_kernel")
    BM, BN = 32 * NW, 16 * NT
    NMT = 2048 // BM
    NNT = 576 // BN
    NWG = NMT * NNT
    XT_B = BM * 128
    WP = BN * 2
    WT_B = 64 * WP
    WPIECES = WT_B // 1024
    assert WT_B % 1024 == 0
    STG = XT_B + WT_B
    WB0 = NSTAGE * XT_B
    BTB = NSTAGE * STG
    assert BM == 64
    LDS = BTB + BN * 128
    nthr = 64 * NW
    wp_per_wave = (WPIECES + NW - 1) // NW
    assert WPIECES % NW == 0
    prologue_ptrs(k, [(6, 16), (8, 104), (10, 88)])
    lab_exit = k.newlabel("exit")
    k.I("s_cmp_ge_u32", "s2", NWG)
    k.I("s_cbranch_scc1", lab_exit)
    k.wait(lgkm=0)
    make_srd(k, S_W, 6, 576 * 576 * 2)
    make_srd(k, S_WS, 8, LY.WS_USED)
    make_srd(k, S_OUT, 10, 2048 * 576 * 2)
    R = RA(1, 256)
    vl = R.a(); vi = R.a(); vg = R.a(); t0 = R.a(); t1 = R.a(); t2 = R.a()
    assert NMT & (NMT - 1) == 0
    k.I("s_and_b32", s(S_MT), "s2", NMT - 1)
    k.I("s_lshr_b32", s(S_NT), "s2", NMT.bit_length() - 1)
    k.I("v_and_b32", v(vl), 63, "v0")
    k.I("v_and_b32", v(vi), 15, "v0")
    k.I("v_lshrrev_b32", v(vg), 4, v(vl))
    k.I("v_lshrrev_b32", v(t0), 6, "v0")
    k.I("v_readfirstlane_b32", s(S_WAVE), v(t0))
    k.I("s_mul_i32", s(S_S0), s(S_MT), BM)
    k.I("s_lshl_b32", s(S_T1), s(S_WAVE), 5)
    k.I("s_add_u32", s(S_T0), s(S_S0), s(S_T1))
    k.I("s_mul_i32", s(S_XK), s(S_T0), 1152)
    k.I("s_add_u32", s(S_XK), s(S_XK), LY.O_OFF)
    k.I("s_mul_i32", s(S_WKOFF), s(S_NT), WP)
    k.I("s_lshl_b32", s(S_M0X), s(S_WAVE), 12)
    k.I("s_lshl_b32", s(S_M0W), s(S_WAVE), 10)
    k.I("s_add_u32", s(S_M0W), s(S_M0W), WB0)
    xd = R.a(4, 4)
    k.I("v_lshrrev_b32", v(t0), 3, v(vl))
    k.I("s_mov_b32", s(S_T2), 1152)
    k.I("v_mul_lo_u32", v(t0), v(t0), s(S_T2))
    k.I("v_and_b32", v(t1), 7, v(vl))
    k.I("v_xor_b32", v(t1), v(t1), v(vg))
    k.I("v_lshl_add_u32", v(xd), v(t1), 4, v(t0))
    k.I("v_xor_b32", v(t2), 64, v(xd))
    k.I("v_add_u32", v(xd + 1), 9216, v(t2))
    k.I("v_add_u32", v(xd + 2), 2 * 9216, v(xd))
    k.I("v_add_u32", v(xd + 3), 3 * 9216, v(t2))
    wd = R.a(wp_per_wave)
    upr = 2 * NT
    magic = (65536 + upr - 1) // upr
    for u in range(WPIECES * 64):
        assert (u * magic) >> 16 == u // upr
    k.I("s_mov_b32", s(S_T3), 1152)
    k.I("s_mov_b32", s(S_T2), magic)
    for i in range(wp_per_wave):
        k.I("v_add_u32", v(t0), nthr * i, "v0")
        k.I("v_mul_lo_u32", v(t1), v(t0), s(S_T2))
        k.I("v_lshrrev_b32", v(t1), 16, v(t1))
        k.I("v_mul_u32_u24", v(t2), upr, v(t1))
        k.I("v_sub_u32", v(t2), v(t0), v(t2))
        k.I("v_mul_lo_u32", v(t1), v(t1), s(S_T3))
        k.I("v_lshl_add_u32", v(wd + i), v(t2), 4, v(t1))
    xa = R.a(4)
    k.I("v_lshlrev_b32", v(t0), 5, s(S_WAVE))
    k.I("v_add_u32", v(t0), v(t0), v(vi))
    k.I("v_lshlrev_b32", v(t0), 7, v(t0))
    k.I("v_and_b32", v(t1), 1, v(vg))
    k.I("v_lshl_add_u32", v(t0), v(t1), 3, v(t0))
    k.I("v_lshrrev_b32", v(t1), 1, v(vg))
    k.I("v_lshrrev_b32", v(t2), 1, v(vi))
    for ks in range(2):
        for h in range(2):
            tt = v(xa + ks * 2 + h)
            k.I("v_add_u32", tt, 4 * ks + 2 * h, v(t1))
            k.I("v_xor_b32", tt, tt, v(t2))
            k.I("v_lshl_add_u32", tt, tt, 4, v(t0))
    wa = R.a()
    k.I("v_lshrrev_b32", v(t0), 2, v(vi))
    k.I("v_lshl_add_u32", v(t0), v(vg), 2, v(t0))
    k.I("v_mul_u32_u24", v(t0), WP, v(t0))
    k.I("v_and_b32", v(t1), 3, v(vi))
    k.I("v_lshl_add_u32", v(t0), v(t1), 3, v(t0))
    k.I("v_add_u32", v(wa), WB0, v(t0))
    acc = R.a(2 * NT * 4, 4)
    fx = R.a(16, 4)
    fw = R.a(2 * NT * 4, 4)
    for i in range(2 * NT * 4):
        k.I("v_mov_b32", v(acc + i), 0)
    NDMA = 4 + wp_per_wave

    def issue_dma(buf):
        for j in range(4):
            k.I("s_add_u32", "m0", s(S_M0X), buf * XT_B + j * 1024)
            k.I("buffer_load_dwordx4", v(xd + j), sr(S_WS, 4), s(S_XK), mods="offen lds")
        for i in range(wp_per_wave):
            k.I("s_add_u32", "m0", s(S_M0W), buf * WT_B + i * 1024 * NW)
            k.I("buffer_load_dwordx4", v(wd + i), sr(S_W, 4), s(S_WKOFF), mods="offen lds")
        k.I("s_add_u32", s(S_XK), s(S_XK), 128)
        k.I("s_add_u32", s(S_WKOFF), s(S_WKOFF), 64 * 1152)

    def read_frags(set_, buf, ks, t_list, with_x):
        if with_x:
            for st in range(2):
                for h in range(2):
                    k.I("ds_read_b64", vr(fx + set_ * 8 + st * 4 + h * 2, 2), v(xa + ks * 2 + h),
                        mods="offset:%d" % (buf * XT_B + st * 2048))
        for t in t_list:
            for h in range(2):
                k.I("ds_read_b64_tr_b16", vr(fw + set_ * NT * 4 + t * 4 + h * 2, 2), v(wa),
                    mods="offset:%d" % (buf * WT_B + ks * 32 * WP + h * 16 * WP + t * 32))

    def mfmas(set_, t):
        W = vr(fw + set_ * NT * 4 + t * 4, 4)
        for st in range(2):
            X = vr(fx + set_ * 8 + st * 4, 4)
            A = vr(acc + (st * NT + t) * 4, 4)
            k.I("v_mfma_f32_16x16x32_bf16", A, W, X, A)

    bd = R.a()
    k.I("v_lshrrev_b32", v(t0), 3, v(vl))
    k.I("v_lshlrev_b32", v(t0), 12, v(t0))
    k.I("v_and_b32", v(t1), 7, v(vl))
    k.I("v_lshl_add_u32", v(bd), v(t1), 4, v(t0))
    k.I("s_mul_i32", s(S_T0), s(S_NT), BN * 4096)
    k.I("s_lshl_b32", s(S_T1), s(S_S0), 1)
    k.I("s_add_u32", s(S_T0), s(S_T0), s(S_T1))
    k.I("s_add_u32", s(S_T0), s(S_T0), LY.B_OFF)
    k.I("s_lshl_b32", s(S_T1), s(S_WAVE), 15)
    k.I("s_add_u32", s(S_T0), s(S_T0), s(S_T1))
    k.I("s_lshl_b32", s(S_T1), s(S_WAVE), 10)
    for i in range(BN // 8 // NW):
        k.I("s_add_u32", "m0", s(S_T1), BTB + i * NW * 1024)
        k.I("s_add_u32", s(S_T2), s(S_T0), i * NW * 8 * 4096)
        k.I("buffer_load_dwordx4", v(bd), sr(S_WS, 4), s(S_T2), mods="offen lds")
    nkt = 9
    for p in range(NSTAGE - 1):
        issue_dma(p)
    for kt in range(nkt):
        buf = kt % NSTAGE
        ahead = min(NSTAGE - 2, nkt - 1 - kt)
        k.wait(vm=ahead * NDMA)
        k.I("s_barrier")
        if kt + NSTAGE - 1 < nkt:
            issue_dma((kt + NSTAGE - 1) % NSTAGE)
        read_frags(0, buf, 0, range(NT), True)
        for t in range(NT):
            read_frags(1, buf, 1, [t], t == 0)
            mfmas(0, t)
        for t in range(NT):
            mfmas(1, t)
    gs = R.a(2); og = R.a(2)
    k.I("s_lshl_b32", s(S_T1), s(S_WAVE), 5)
    k.I("s_add_u32", s(S_T0), s(S_S0), s(S_T1))
    k.I("s_lshl_b32", s(S_T1), s(S_T0), 2)
    k.I("s_add_u32", s(S_T1), s(S_T1), LY.G_OFF)
    k.I("v_lshlrev_b32", v(t0), 2, v(vi))
    k.I("buffer_load_dword", v(gs), v(t0), sr(S_WS, 4), s(S_T1), mods="offen")
    k.I("buffer_load_dword", v(gs + 1), v(t0), sr(S_WS, 4), s(S_T1), mods="offen offset:64")
    k.I("v_mul_u32_u24", v(t1), 1152, v(vi))
    k.I("v_lshl_add_u32", v(t1), v(vg), 3, v(t1))
    k.I("s_mul_i32", s(S_T2), s(S_T0), 1152)
    k.I("s_mul_i32", s(S_T3), s(S_NT), WP)
    k.I("s_add_u32", s(S_T2), s(S_T2), s(S_T3))
    k.I("s_add_u32", s(S_T3), s(S_T2), LY.B_OFF)
    bb = fw
    k.I("v_lshrrev_b32", v(t0), 2, v(vi))
    k.I("v_lshl_add_u32", v(t0), v(vg), 2, v(t0))
    k.I("v_lshlrev_b32", v(t0), 7, v(t0))
    k.I("v_and_b32", v(t2), 3, v(vi))
    k.I("v_lshl_add_u32", v(t0), v(t2), 3, v(t0))
    k.I("s_lshl_b32", s(S_T1), s(S_WAVE), 6)
    k.I("s_add_u32", s(S_T1), s(S_T1), BTB)
    k.I("v_add_u32", v(t0), s(S_T1), v(t0))
    for st in range(2):
        for t in range(NT):
            k.I("ds_read_b64_tr_b16", vr(bb + (st * NT + t) * 2, 2), v(t0), mods="offset:%d" % (t * 16 * 128 + st * 32))
    for st in range(2):
        k.I("v_sub_f32", v(og + st), 1.0, v(gs + st))
        k.I("v_cvt_pk_bf16_f32", v(og + st), v(og + st), v(og + st))
        k.I("v_lshlrev_b32", v(og + st), 16, v(og + st))
    tm = [R.a() for _ in range(8)]
    for st in range(2):
        k.I("s_add_u32", s(S_T1), s(S_T2), st * 16 * 1152)
        for t in range(NT):
            a = acc + (st * NT + t) * 4
            b2 = bb + (st * NT + t) * 2
            k.I("v_cvt_pk_bf16_f32", v(tm[0]), v(a), v(a + 1))
            k.I("v_cvt_pk_bf16_f32", v(tm[1]), v(a + 2), v(a + 3))
            k.I("v_lshlrev_b32", v(a), 16, v(tm[0]))
            k.I("v_and_b32", v(a + 1), "0xffff0000", v(tm[0]))
            k.I("v_lshlrev_b32", v(a + 2), 16, v(tm[1]))
            k.I("v_and_b32", v(a + 3), "0xffff0000", v(tm[1]))
            for r in range(4):
                k.I("v_mul_f32", v(a + r), v(gs + st), v(a + r))
            k.I("v_cvt_pk_bf16_f32", v(tm[0]), v(a), v(a + 1))
            k.I("v_cvt_pk_bf16_f32", v(tm[1]), v(a + 2), v(a + 3))
            k.I("v_lshlrev_b32", v(tm[2]), 16, v(b2))
            k.I("v_and_b32", v(tm[3]), "0xffff0000", v(b2))
            k.I("v_lshlrev_b32", v(tm[4]), 16, v(b2 + 1))
            k.I("v_and_b32", v(tm[5]), "0xffff0000", v(b2 + 1))
            for r in range(4):
                k.I("v_mul_f32", v(tm[2 + r]), v(og + st), v(tm[2 + r]))
            k.I("v_cvt_pk_bf16_f32", v(tm[2]), v(tm[2]), v(tm[3]))
            k.I("v_cvt_pk_bf16_f32", v(tm[3]), v(tm[4]), v(tm[5]))
            for hf in range(2):
                k.I("v_lshlrev_b32", v(tm[4]), 16, v(tm[hf]))
                k.I("v_lshlrev_b32", v(tm[5]), 16, v(tm[2 + hf]))
                k.I("v_add_f32", v(tm[4]), v(tm[4]), v(tm[5]))
                k.I("v_and_b32", v(tm[5]), "0xffff0000", v(tm[hf]))
                k.I("v_and_b32", v(tm[6]), "0xffff0000", v(tm[2 + hf]))
                k.I("v_add_f32", v(tm[5]), v(tm[5]), v(tm[6]))
                k.I("v_cvt_pk_bf16_f32", v(b2 + hf), v(tm[4]), v(tm[5]))
            k.I("buffer_store_dwordx2", vr(b2, 2), v(t1), sr(S_OUT, 4), s(S_T1), mods="offen offset:%d" % (32 * t))
    k.L(lab_exit)
    k.I("s_endpgm")
    return k, dict(grid=NWG, block=nthr, lds=LDS)
```

```python
S = 2048
D = 576
H = 32
DH = 18
NST = 128

QP_OFF = 0
QP_BYTES = H * S * 32 * 2
KV_OFF = QP_OFF + QP_BYTES
KPART = 256 * 48
VPITCH = 528
VPART = 10240
KVREC = KPART + VPART
KV_BYTES = H * 8 * KVREC
XT_OFF = KV_OFF + KV_BYTES
XT_BYTES = D * S * 2
KRV = 4112
KRP = 2 * KRV
KR_OFF = XT_OFF + XT_BYTES
KR_BYTES = D * KRP
G_OFF = KR_OFF + KR_BYTES
G_BYTES = S * 4
O_OFF = G_OFF + G_BYTES
O_BYTES = S * D * 2
B_OFF = O_OFF + O_BYTES
B_BYTES = S * D * 2
WS_USED = B_OFF + B_BYTES
WS_BYTES = 268435456
```

```python
import sys
sys.path.insert(0, "gen")
from asmlib import *
import gen as G


def build(pattern, block, iters=256):
    k = Kernel("mb_kernel")
    k.I("v_lshrrev_b32", "v1", 6, "v0")
    k.I("v_readfirstlane_b32", "s16", "v1")
    for i in range(128):
        if i >= 4:
            k.I("v_mov_b32", v(i), 0)
    k.I("v_and_b32", "v2", 63, "v0")
    k.I("v_lshlrev_b32", "v2", 4, "v2")
    k.stampv_init(3, 64)
    k.I("s_mov_b32", "s20", 0)
    k.I("s_barrier")
    k.stampv("start")
    lab = "mb_loop"
    k.L(lab)
    ei = 0
    for tok in pattern.split(","):
        c, n = tok[0], int(tok[1:] or 1)
        for j in range(n):
            if c == "M":
                k.I("v_mfma_f32_32x32x16_bf16", "v[16:31]", "v[8:11]", "v[12:15]", "v[16:31]")
            elif c == "N":
                k.I("v_mfma_f32_32x32x16_bf16", "v[32:47]", "v[8:11]", "v[12:15]", "v[32:47]")
            elif c == "Z":
                k.I("v_mfma_f32_32x32x16_bf16", "v[48:63]", "v[8:11]", "v[12:15]", 0)
            elif c == "E":
                r = 64 + (ei % 16); ei += 1
                k.I("v_exp_f32", v(r), v(r))
            elif c == "A":
                r = 64 + (ei % 16); ei += 1
                k.I("v_add_f32", v(r), v(r), v(r))
            elif c == "C":
                r = 64 + (ei % 16); ei += 1
                k.I("v_cvt_pk_bf16_f32", v(r), v(80), v(81))
            elif c == "X":
                r = 64 + (ei % 16); ei += 1
                k.I("v_max3_f32", v(r), v(80), v(81), v(82))
            elif c == "P":
                r = 64 + 2 * (ei % 8); ei += 1
                k.I("v_pk_mul_f32", vr(r, 2), vr(r, 2), vr(r, 2))
            elif c == "L":
                r = 96 + 4 * (ei % 4); ei += 1
                k.I("ds_read_b128", vr(r, 4), "v2")
    k.I("s_add_u32", "s20", "s20", 1)
    k.I("s_cmp_lt_u32", "s20", iters)
    k.I("s_cbranch_scc1", lab)
    k.I("s_waitcnt", "lgkmcnt(0)")
    k.I("s_nop", 7); k.I("s_nop", 7); k.I("s_nop", 7)
    k.stampv("end")
    lx = "mb_nodump"
    k.I("s_cmp_lg_u32", "s2", 0)
    k.I("s_cbranch_scc1", lx)
    k.I("s_cmp_lg_u32", "s16", 0)
    k.I("s_cbranch_scc1", lx)
    k.stampv_dump(1)
    k.L(lx)
    k.I("s_endpgm")
    k.auto_wait = lambda: None
    k.wait_check = lambda: []
    return k, dict(grid=256, block=block, lds=4096)


if __name__ == "__main__":
    G.emit([build(sys.argv[2], int(sys.argv[3]))], sys.argv[1])
```

```python
import re

VCC = (1106, 1107)
EXEC = (1126, 1127)
M0 = 1124
SCC = 1200

_re_vr = re.compile(r"^v\[(\d+):(\d+)\]$")
_re_v = re.compile(r"^v(\d+)$")
_re_sr = re.compile(r"^s\[(\d+):(\d+)\]$")
_re_s = re.compile(r"^s(\d+)$")


def v(i):
    return "v%d" % i


def vr(i, n):
    assert n >= 1
    return "v%d" % i if n == 1 else "v[%d:%d]" % (i, i + n - 1)


def s(i):
    return "s%d" % i


def sr(i, n):
    return "s%d" % i if n == 1 else "s[%d:%d]" % (i, i + n - 1)


def regs_of(opnd):
    o = opnd.strip()
    if o.startswith("-") or o.startswith("|"):
        o = o.strip("-|")
    m = _re_vr.match(o)
    if m:
        return list(range(int(m.group(1)), int(m.group(2)) + 1))
    m = _re_v.match(o)
    if m:
        return [int(m.group(1))]
    m = _re_sr.match(o)
    if m:
        return [1000 + i for i in range(int(m.group(1)), int(m.group(2)) + 1)]
    m = _re_s.match(o)
    if m:
        return [1000 + int(m.group(1))]
    if o == "vcc":
        return list(VCC)
    if o == "exec":
        return list(EXEC)
    if o == "m0":
        return [M0]
    if o == "vcc_lo":
        return [VCC[0]]
    if o == "exec_lo":
        return [EXEC[0]]
    return []


TRANS = ("v_exp_f32", "v_log_f32", "v_rcp_f32", "v_rsq_f32", "v_sqrt_f32", "v_sin_f32", "v_cos_f32",
         "v_rcp_iflag_f32")
MFMA_INFO = {
    "v_mfma_f32_32x32x16_bf16": (8, "xdl", 16),
    "v_mfma_f32_16x16x32_bf16": (4, "xdl", 4),
    "v_mfma_f32_32x32x2_f32": (16, "sgemm", 16),
    "v_mfma_f32_16x16x4_f32": (8, "sgemm", 4),
}


class Ins:
    __slots__ = ("op", "opnds", "mods", "kind", "wr", "rd", "text", "label", "comment", "flags")

    def __init__(self, op, opnds, mods="", comment=""):
        self.op = op
        self.opnds = [str(o) for o in opnds]
        self.mods = mods
        self.comment = comment
        self.label = None
        self.flags = set()
        m = re.search(r"offset:(\d+)", mods)
        if m:
            lim = 65535 if op.startswith("ds_") else 4095
            assert int(m.group(1)) <= lim, "offset too large: %s %s" % (op, mods)
        self.classify()

    def classify(self):
        op = self.op
        O = self.opnds
        wr, rd = [], []
        R = regs_of
        if op.startswith("v_mfma"):
            self.kind = "mfma"
            wr = R(O[0])
            rd = R(O[1]) + R(O[2]) + R(O[3])
        elif op.startswith("v_"):
            self.kind = "trans" if op in TRANS else "valu"
            if op.startswith("v_cmp"):
                wr = R(O[0])
                rd = sum((R(x) for x in O[1:]), [])
                if op.startswith("v_cmpx"):
                    wr = wr + list(EXEC)
            elif op.startswith("v_readfirstlane") or op.startswith("v_readlane"):
                wr = R(O[0])
                rd = sum((R(x) for x in O[1:]), [])
                self.flags.add("readlane")
            elif op.startswith("v_permlane") or op.startswith("v_swap"):
                wr = R(O[0]) + R(O[1])
                rd = R(O[0]) + R(O[1])
                self.flags.add("permlane")
            else:
                wr = R(O[0])
                rd = sum((R(x) for x in O[1:]), [])
                base = op[:-4] if op.endswith("_e32") or op.endswith("_e64") else op
                if base in ("v_cndmask_b32",) and len(O) == 3:
                    rd += list(VCC)
                if base in ("v_add_co_u32", "v_sub_co_u32", "v_subrev_co_u32", "v_addc_co_u32", "v_subb_co_u32"):
                    wr = R(O[0]) + R(O[1])
                    rd = sum((R(x) for x in O[2:]), [])
                if base in ("v_fmac_f32", "v_mac_f32", "v_pk_fmac_f16", "v_dot2c_f32_bf16", "v_fmaak_f32x"):
                    rd += R(O[0])
                if "dpp" in self.mods or "row_" in self.mods or "quad_perm" in self.mods or op.endswith("_dpp"):
                    self.flags.add("dpp")
                    rd += R(O[0])
                if "sdwa" in op or "dst_sel" in self.mods:
                    rd += R(O[0])
                if "op_sel" in self.mods and base in ("v_cvt_pk_bf16_f32",):
                    pass
        elif op.startswith("buffer_") or op.startswith("global_") or op.startswith("flat_"):
            self.kind = "vmem"
            is_store = "_store" in op
            is_atomic = "_atomic" in op
            lds = re.search(r"\blds\b", self.mods) is not None or "_lds_" in op
            if is_store:
                rd = sum((R(x) for x in O), [])
                self.flags.add("store")
                if "x4" in op or "x3" in op:
                    self.flags.add("widestore")
            elif lds:
                rd = sum((R(x) for x in O), []) + [M0]
                self.flags.add("ldsdma")
            elif is_atomic:
                rd = sum((R(x) for x in O), [])
                if "glc" in self.mods or "sc0" in self.mods:
                    wr = R(O[0])
            else:
                wr = R(O[0])
                rd = sum((R(x) for x in O[1:]), [])
        elif op.startswith("ds_"):
            self.kind = "ds"
            if op.startswith("ds_read") or op.startswith("ds_bpermute") or op.startswith("ds_permute") or op.startswith("ds_swizzle"):
                wr = R(O[0])
                rd = sum((R(x) for x in O[1:]), [])
            else:
                rd = sum((R(x) for x in O), [])
                self.flags.add("store")
        elif op.startswith("s_"):
            if op.startswith("s_load") or op.startswith("s_buffer_load"):
                self.kind = "smem"
                wr = R(O[0])
                rd = sum((R(x) for x in O[1:]), [])
            elif op in ("s_waitcnt", "s_barrier", "s_nop", "s_endpgm", "s_setprio", "s_sleep") or op.startswith("s_branch") or op.startswith("s_cbranch"):
                self.kind = "sctl"
                if op == "s_cbranch_vccnz" or op == "s_cbranch_vccz":
                    rd = list(VCC)
                if op in ("s_cbranch_execz", "s_cbranch_execnz"):
                    rd = list(EXEC)
            else:
                self.kind = "salu"
                if op.startswith("s_cmp") or op.startswith("s_bitcmp"):
                    rd = sum((R(x) for x in O), [])
                else:
                    wr = R(O[0])
                    rd = sum((R(x) for x in O[1:]), [])
                    if "saveexec" in op:
                        wr = wr + list(EXEC)
                        rd = rd + list(EXEC)
        else:
            raise ValueError("unknown op " + op)
        self.wr = wr
        self.rd = rd

    def states(self):
        if self.op == "s_nop":
            return int(self.opnds[0], 0) + 1
        return 1

    def __str__(self):
        t = "    " + self.op
        if self.opnds:
            t += " " + ", ".join(self.opnds)
        if self.mods:
            t += " " + self.mods
        if self.comment:
            t += "    ; " + self.comment
        return t


class Label:
    def __init__(self, name):
        self.name = name

    def __str__(self):
        return self.name + ":"


class Raw:
    def __init__(self, text):
        self.text = text

    def __str__(self):
        return self.text


def _ov(a, b):
    if not a or not b:
        return False
    return not set(a).isdisjoint(b)


def _vg(regs):
    return [r for r in regs if r < 1000]


def _sg(regs):
    return [r for r in regs if r >= 1000]


def required_states(p, c):
    need = 0
    pk, ck = p.kind, c.kind
    p_valu = pk in ("valu", "trans")
    c_valu = ck in ("valu", "trans")
    pwv, pws = _vg(p.wr), _sg(p.wr)
    crv, crs = _vg(c.rd), _sg(c.rd)
    cwv = _vg(c.wr)
    if p_valu and ck == "mfma" and _ov(pwv, crv):
        need = max(need, 2)
    if pk == "mfma":
        passes, cls, dsz = MFMA_INFO[p.op]
        D = p.wr
        idx = {2: 0, 4: 1, 8: 2, 16: 3}[passes]
        if ck == "mfma":
            cA = regs_of(c.opnds[1]) + regs_of(c.opnds[2])
            cC = regs_of(c.opnds[3])
            cpasses, ccls, _ = MFMA_INFO[c.op]
            if _ov(D, cC):
                if cC == D and c.op == p.op:
                    need = max(need, 2 if passes == 2 else 0)
                else:
                    if cls == "xdl":
                        need = max(need, (4, 6, 10, 18)[idx] if ccls == "xdl" else (3, 6, 10, 18)[idx])
                    else:
                        need = max(need, (2, 4, 8, 16)[idx] if ccls == "sgemm" else 0)
            if _ov(D, cA):
                need = max(need, (5, 8, 12, 20)[idx] if cls == "xdl" else (4, 6, 10, 18)[idx])
            if _ov(D, c.wr) and not _ov(D, cC):
                need = max(need, (5, 8, 12, 20)[idx] if cls == "xdl" else (4, 6, 10, 18)[idx])
        elif c_valu or ck in ("vmem", "ds"):
            if _ov(D, crv) or _ov(D, cwv):
                need = max(need, (5, 8, 12, 20)[idx] if cls == "xdl" else (4, 6, 10, 18)[idx])
        if cls == "xdl" and c_valu:
            pC = regs_of(p.opnds[3])
            if _ov(pC, cwv):
                need = max(need, (1, 3, 7, 15)[idx])
    if pk == "trans" and ck == "valu" and (_ov(pwv, crv) or _ov(pwv, cwv)):
        need = max(need, 1)
    if p_valu:
        if pws:
            if c_valu and _ov(pws, crs):
                need = max(need, 4 if "readlane" in c.flags else 2)
            if ck == "vmem" and _ov(pws, crs):
                need = max(need, 5)
            if ck == "sctl" and _ov(pws, crs):
                need = max(need, 5)
            if ck in ("salu", "smem") and _ov(pws, crs):
                need = max(need, 2)
        if "readlane" in c.flags and _ov(pwv, crv):
            need = max(need, 1)
        if ("dpp" in c.flags or "permlane" in c.flags) and _ov(pwv, crv):
            need = max(need, 2)
        if _ov(pws, EXEC) and "dpp" in c.flags:
            need = max(need, 5)
        if _ov(pws, EXEC) and ck == "mfma":
            need = max(need, 4)
    if "widestore" in p.flags:
        data = regs_of(p.opnds[0])
        if _ov(data, cwv):
            need = max(need, 2 if c_valu else 1)
    if pk == "salu" and M0 in p.wr and (M0 in c.rd):
        need = max(need, 1)
    return need


class Kernel:
    def __init__(self, name):
        self.name = name
        self.items = []
        self.max_v = 0
        self.max_s = 0
        self._lab = 0

    def I(self, op, *opnds, mods="", comment=""):
        ins = Ins(op, opnds, mods, comment)
        self.items.append(ins)
        for r in ins.wr + ins.rd:
            if r < 1000:
                self.max_v = max(self.max_v, r + 1)
            elif r < 1102:
                self.max_s = max(self.max_s, r - 1000 + 1)
        return ins

    def L(self, name):
        self.items.append(Label(name))

    def C(self, text):
        self.items.append(Raw("    ; " + text))

    def newlabel(self, base="L"):
        self._lab += 1
        return "%s_%s_%d" % (self.name, base, self._lab)

    def wait(self, vm=None, lgkm=None):
        parts = []
        if vm is not None:
            parts.append("vmcnt(%d)" % vm)
        if lgkm is not None:
            parts.append("lgkmcnt(%d)" % lgkm)
        self.I("s_waitcnt", " ".join(parts))

    def _label_index(self):
        return {it.name: i for i, it in enumerate(self.items) if isinstance(it, Label)}

    def hazard_pass(self):
        items = self.items
        out = []
        branch_src = {}
        for i, it in enumerate(items):
            if isinstance(it, Ins) and (it.op.startswith("s_branch") or it.op.startswith("s_cbranch")):
                branch_src.setdefault(it.opnds[0], []).append(i)

        def lookback(seq, pos, c, dist, depth=0):
            worst = 0
            j = pos
            while j >= 0 and dist < 21:
                it = seq[j]
                if isinstance(it, Label):
                    if depth < 3:
                        for b in branch_src.get(it.name, []):
                            worst = max(worst, lookback(items, b, c, dist, depth + 1))
                    j -= 1
                    continue
                if isinstance(it, Raw):
                    j -= 1
                    continue
                if it.op == "s_endpgm" or it.op == "s_branch":
                    if not (depth > 0 and j == pos):
                        break
                req = required_states(it, c)
                if req > dist:
                    worst = max(worst, req - dist)
                dist += it.states()
                j -= 1
            return worst

        for it in items:
            if isinstance(it, Ins):
                need = lookback(out, len(out) - 1, it, 0)
                if need > 0:
                    nop = Ins("s_nop", [str(need - 1)])
                    out.append(nop)
            out.append(it)
        self.items = out

    def wait_check(self, verbose=True):
        items = self.items
        lab = self._label_index()
        errors = []
        vmq = []
        lgq = []
        i = 0
        taken = {}
        steps = 0
        n = len(items)
        while i < n:
            steps += 1
            if steps > 5_000_000:
                errors.append("wait_check: too many steps")
                break
            it = items[i]
            if not isinstance(it, Ins):
                i += 1
                continue
            if it.op == "s_waitcnt":
                t = it.opnds[0]
                m = re.search(r"vmcnt\((\d+)\)", t)
                if m:
                    k = int(m.group(1))
                    while len(vmq) > k:
                        vmq.pop(0)
                m = re.search(r"lgkmcnt\((\d+)\)", t)
                if m:
                    k = int(m.group(1))
                    if any(e[2] for e in lgq):
                        if k == 0:
                            lgq = []
                        else:
                            pass
                    else:
                        while len(lgq) > k:
                            lgq.pop(0)
                i += 1
                continue
            touched = set(it.rd) | set(it.wr)
            for q, nm in ((vmq, "vmcnt"), (lgq, "lgkmcnt")):
                for e in q:
                    if touched & set(e[0]):
                        errors.append("%s: line %d '%s' touches regs pending from line %d '%s' (%s)" % (
                            self.name, i, str(it).strip(), e[1], str(items[e[1]]).strip(), nm))
            if it.kind == "vmem":
                vmq.append((list(it.wr), i))
                if len(vmq) > 63:
                    errors.append("%s: vmcnt overflow at %d" % (self.name, i))
            elif it.kind == "ds":
                lgq.append((list(it.wr), i, False))
            elif it.kind == "smem":
                lgq.append((list(it.wr), i, True))
            if it.op == "s_endpgm":
                vmq, lgq = [], []
                i += 1
                continue
            if it.op == "s_branch":
                tgt = lab[it.opnds[0]]
                if tgt < i:
                    c = taken.get(i, 0)
                    if c < 1:
                        taken[i] = c + 1
                        i = tgt
                    else:
                        i += 1
                    continue
                i = tgt
                continue
            if it.op.startswith("s_cbranch"):
                tgt = lab[it.opnds[0]]
                if tgt < i:
                    c = taken.get(i, 0)
                    if c < 1:
                        taken[i] = c + 1
                        i = tgt
                        continue
            i += 1
        seen = set()
        uniq = []
        for e in errors:
            if e not in seen:
                seen.add(e)
                uniq.append(e)
        return uniq


    def auto_wait(self):
        out = []
        vmq, lgq = [], []
        for it in self.items:
            if not isinstance(it, Ins):
                out.append(it)
                continue
            if it.op == "s_waitcnt":
                t = it.opnds[0]
                m = re.search(r"vmcnt\((\d+)\)", t)
                if m:
                    k = int(m.group(1))
                    while len(vmq) > k:
                        vmq.pop(0)
                m = re.search(r"lgkmcnt\((\d+)\)", t)
                if m:
                    k = int(m.group(1))
                    if any(e[1] for e in lgq):
                        if k == 0:
                            lgq = []
                    else:
                        while len(lgq) > k:
                            lgq.pop(0)
                out.append(it)
                continue
            touched = set(it.rd) | set(it.wr)
            needv = needl = None
            for j in range(len(vmq) - 1, -1, -1):
                if touched & set(vmq[j][0]):
                    needv = len(vmq) - 1 - j
                    break
            for j in range(len(lgq) - 1, -1, -1):
                if touched & set(lgq[j][0]):
                    needl = len(lgq) - 1 - j
                    break
            if needl is not None and any(e[1] for e in lgq):
                needl = 0
            if needv is not None or needl is not None:
                parts = []
                if needv is not None:
                    needv = min(needv, 63)
                    parts.append("vmcnt(%d)" % needv)
                    while len(vmq) > needv:
                        vmq.pop(0)
                if needl is not None:
                    needl = min(needl, 15)
                    parts.append("lgkmcnt(%d)" % needl)
                    if needl == 0:
                        lgq = []
                    else:
                        while len(lgq) > needl:
                            lgq.pop(0)
                out.append(Ins("s_waitcnt", [" ".join(parts)]))
            if it.kind == "vmem":
                vmq.append((list(it.wr), False))
            elif it.kind == "ds":
                lgq.append((list(it.wr), False))
            elif it.kind == "smem":
                lgq.append((list(it.wr), True))
            out.append(it)
            if it.op == "s_endpgm":
                vmq, lgq = [], []
        self.items = out

    def stamp_init(self, base=64):
        self.st_base = base
        self.st_n = 0

    def stamp(self, name=""):
        if not getattr(self, "st_base", None):
            return
        r = self.st_base + 2 + self.st_n
        assert r < 100
        self.I("s_memtime", sr(self.st_base, 2))
        self.I("s_waitcnt", "lgkmcnt(0)")
        self.I("s_mov_b32", s(r), s(self.st_base), comment="stamp %d %s" % (self.st_n, name))
        self.st_n += 1

    def stampv_init(self, vreg, base=64):
        self.sv_reg = vreg
        self.sv_base = base
        self.I("s_mov_b32", s(base + 2), 0)
        self.I("v_mov_b32", v(vreg), 0)

    def stampv(self, name=""):
        if getattr(self, "sv_reg", None) is None:
            return
        b = self.sv_base
        import os
        if os.environ.get("LEAN") and (name.startswith("blk") or name.startswith("loop")):
            return
        self.I("s_memrealtime" if os.environ.get("STAMPRT") else "s_memtime", sr(b, 2))
        self.I("s_waitcnt", "lgkmcnt(0)")
        self.I("s_mov_b32", "m0", s(b + 2))
        self.I("s_nop", 0)
        self.I("v_writelane_b32", v(self.sv_reg), s(b), "m0", comment="stampv " + name)
        self.I("s_add_u32", s(b + 2), s(b + 2), 1)

    def stampv_dump(self, vtmp1):
        b = self.sv_base
        self.I("s_load_dwordx2", sr(b, 2), "s[0:1]", 96)
        self.I("s_waitcnt", "lgkmcnt(0)")
        self.I("s_mov_b32", s(b + 2), 256)
        self.I("s_mov_b32", s(b + 3), "0x00020000")
        self.I("v_mbcnt_lo_u32_b32", v(vtmp1), -1, 0)
        self.I("v_mbcnt_hi_u32_b32", v(vtmp1), -1, v(vtmp1))
        self.I("v_lshlrev_b32", v(vtmp1), 2, v(vtmp1))
        self.I("buffer_store_dword", v(self.sv_reg), v(vtmp1), sr(b, 4), 0, mods="offen")
        self.I("s_waitcnt", "vmcnt(0)")

    def stamp_dump(self, vtmp0, vtmp1):
        b = self.st_base
        n = self.st_n
        self.I("v_mov_b32", v(vtmp0), 0)
        regs = [b + 2 + i for i in range(n)]
        for i, r in enumerate(regs):
            self.I("v_mov_b32", v(vtmp1), s(r))
            self.I("v_writelane_b32", v(vtmp0), s(r), i)
        self.I("s_load_dwordx2", sr(b, 2), "s[0:1]", 96)
        self.I("s_waitcnt", "lgkmcnt(0)")
        self.I("s_mov_b32", s(b + 2), 256)
        self.I("s_mov_b32", s(b + 3), "0x00020000")
        self.I("v_mbcnt_lo_u32_b32", v(vtmp1), -1, 0)
        self.I("v_mbcnt_hi_u32_b32", v(vtmp1), -1, v(vtmp1))
        self.I("v_lshlrev_b32", v(vtmp1), 2, v(vtmp1))
        self.I("buffer_store_dword", v(vtmp0), v(vtmp1), sr(b, 4), 0, mods="offen")
        self.I("s_waitcnt", "vmcnt(0)")

    def text(self):
        return "\n".join(str(it) for it in self.items)
```

```python
from asmlib import *
import layout as LY

LOG2E = 1.4426950408889634
QSCALE = (18 ** -0.5) * LOG2E


def f32bits(x):
    import struct
    return struct.unpack("<I", struct.pack("<f", x))[0]


class RA:
    def __init__(self, start, limit=256):
        self.n = start
        self.limit = limit

    def a(self, cnt=1, align=1):
        if cnt >= 4:
            align = max(align, 4)
        elif cnt == 2:
            align = max(align, 2)
        self.n = (self.n + align - 1) // align * align
        r = self.n
        self.n += cnt
        assert self.n <= self.limit, "out of registers"
        return r


S_X, S_W, S_WS = 12, 16, 20
S_WAVE = 24
S_XK, S_WKOFF = 25, 26
S_M0X, S_M0W = 27, 28
S_MT, S_NT = 29, 30
S_T0, S_T1, S_T2, S_T3 = 31, 32, 33, 34
S_SAVE = 36
S_H0 = 38
S_S0 = 39
S_C0, S_C1 = 40, 41

XBUF = 8192
WBUF = 9216
STG = XBUF + WBUF
NSTG = 3
LDS_K1 = NSTG * STG


def prologue_ptrs(k, slots):
    for sp, off in slots:
        k.I("s_load_dwordx2", sr(sp, 2), "s[0:1]", off)


def make_srd(k, sd, sp, nbytes):
    k.I("s_mov_b32", s(sd), s(sp))
    k.I("s_mov_b32", s(sd + 1), s(sp + 1))
    k.I("s_mov_b32", s(sd + 2), nbytes)
    k.I("s_mov_b32", s(sd + 3), "0x00020000")


def gemm_mainloop(k, R, orient, nkt, xrow_bytes, wrow_bytes, vt):
    acc = vt["acc"]
    xa = vt["xa"]
    wa = vt["wa"]
    xd = vt["xd"]
    wd = vt["wd"]
    fx = vt["fx"]
    fw = vt["fw"]
    for i in range(72):
        k.I("v_mov_b32", v(acc + i), 0)

    def issue_dma(buf):
        for j in range(2):
            k.I("s_add_u32", "m0", s(S_M0X), buf * STG + j * 1024)
            k.I("buffer_load_dwordx4", v(xd + j), sr(S_X, 4), s(S_XK), mods="offen lds")
        for i in range(2):
            k.I("s_add_u32", "m0", s(S_M0W), buf * STG + i * 4096)
            k.I("buffer_load_dwordx4", v(wd + i), sr(S_W, 4), s(S_WKOFF), mods="offen lds")
        lab = k.newlabel("skipw")
        k.I("s_cmp_ge_u32", s(S_WAVE), 1)
        k.I("s_cbranch_scc1", lab)
        k.I("s_add_u32", "m0", s(S_M0W), buf * STG + 2 * 4096)
        k.I("buffer_load_dwordx4", v(wd + 2), sr(S_W, 4), s(S_WKOFF), mods="offen lds")
        k.L(lab)
        k.I("s_add_u32", s(S_XK), s(S_XK), 64)
        k.I("s_add_u32", s(S_WKOFF), s(S_WKOFF), 32 * wrow_bytes)

    def mfmas(t):
        W = vr(fw + t * 4, 4)
        for st in range(2):
            X = vr(fx + st * 4, 4)
            A = vr(acc + (st * 9 + t) * 4, 4)
            if orient == "NS":
                k.I("v_mfma_f32_16x16x32_bf16", A, W, X, A)
            else:
                k.I("v_mfma_f32_16x16x32_bf16", A, X, W, A)

    issue_dma(0)
    issue_dma(1)
    for kt in range(nkt):
        buf = kt % NSTG
        k.stampv("kt%d" % kt)
        k.I("s_waitcnt", "vmcnt(4)" if kt + 1 < nkt else "vmcnt(0)")
        k.I("s_barrier")
        k.stampv("kt%d w" % kt)
        if kt + 2 < nkt:
            issue_dma((kt + 2) % NSTG)
        for st in range(2):
            for h in range(2):
                k.I("ds_read_b64", vr(fx + st * 4 + h * 2, 2), v(xa + h), mods="offset:%d" % (buf * STG + st * 1024))
        for t in range(9):
            for h in range(2):
                k.I("ds_read_b64_tr_b16", vr(fw + t * 4 + h * 2, 2), v(wa),
                    mods="offset:%d" % (buf * STG + h * 4608 + t * 32))
        for t in range(9):
            mfmas(t)
    return acc


def role_gemm1(k):
    R = RA(1)
    vt = {}
    k.C("---- role: QKV GEMM ----")
    import os
    prof = bool(os.environ.get("K1PROF"))
    if prof:
        vsr = R.a()
        k.stampv_init(vsr, 64)
        k.stampv("start")
    k.I("s_and_b32", s(S_MT), "s2", 15)
    k.I("s_lshr_b32", s(S_NT), "s2", 4)
    vl = R.a(); vi = R.a(); vg = R.a(); t0 = R.a(); t1 = R.a(); t2 = R.a()
    k.I("v_and_b32", v(vl), 63, "v0")
    k.I("v_and_b32", v(vi), 15, "v0")
    k.I("v_lshrrev_b32", v(vg), 4, v(vl))
    k.I("v_lshrrev_b32", v(t0), 6, "v0")
    k.I("v_readfirstlane_b32", s(S_WAVE), v(t0))
    k.I("s_lshl_b32", s(S_T0), s(S_MT), 7)
    k.I("s_mov_b32", s(S_S0), s(S_T0))
    k.I("s_lshl_b32", s(S_T1), s(S_WAVE), 5)
    k.I("s_add_u32", s(S_T0), s(S_T0), s(S_T1))
    k.I("s_mul_i32", s(S_XK), s(S_T0), 1152)
    k.I("s_mul_i32", s(S_WKOFF), s(S_NT), 288)
    k.I("s_lshl_b32", s(S_M0X), s(S_WAVE), 11)
    k.I("s_lshl_b32", s(S_M0W), s(S_WAVE), 10)
    k.I("s_add_u32", s(S_M0W), s(S_M0W), XBUF)
    xd = R.a(2); vt["xd"] = xd
    k.I("v_lshrrev_b32", v(t0), 2, v(vl))
    k.I("s_mov_b32", s(S_T2), 1152)
    k.I("v_mul_lo_u32", v(t0), v(t0), s(S_T2))
    k.I("v_and_b32", v(t1), 3, v(vl))
    k.I("v_xor_b32", v(t1), v(t1), v(vg))
    k.I("v_lshl_add_u32", v(xd), v(t1), 4, v(t0))
    k.I("v_add_u32", v(xd + 1), 16 * 1152, v(xd))
    wd = R.a(3); vt["wd"] = wd
    k.I("s_mov_b32", s(S_T3), 3456)
    k.I("s_movk_i32", s(S_T2), 3641)
    for i in range(3):
        k.I("v_add_u32", v(t0), 256 * i, "v0")
        k.I("v_mul_lo_u32", v(t1), v(t0), s(S_T2))
        k.I("v_lshrrev_b32", v(t1), 16, v(t1))
        k.I("v_mul_u32_u24", v(t2), 18, v(t1))
        k.I("v_sub_u32", v(t2), v(t0), v(t2))
        k.I("v_mul_lo_u32", v(t1), v(t1), s(S_T3))
        k.I("v_lshl_add_u32", v(wd + i), v(t2), 4, v(t1))
    xa = R.a(2); vt["xa"] = xa
    k.I("v_lshlrev_b32", v(t0), 5, s(S_WAVE))
    k.I("v_add_u32", v(t0), v(t0), v(vi))
    k.I("v_lshlrev_b32", v(t0), 6, v(t0))
    k.I("v_and_b32", v(t1), 1, v(vg))
    k.I("v_lshl_add_u32", v(t0), v(t1), 3, v(t0))
    k.I("v_lshrrev_b32", v(t1), 2, v(vi))
    k.I("v_lshrrev_b32", v(t2), 1, v(vg))
    k.I("v_xor_b32", v(t1), v(t1), v(t2))
    k.I("v_lshl_add_u32", v(xa), v(t1), 4, v(t0))
    k.I("v_xor_b32", v(xa + 1), 32, v(xa))
    wa = R.a(); vt["wa"] = wa
    k.I("v_lshrrev_b32", v(t0), 2, v(vi))
    k.I("v_lshl_add_u32", v(t0), v(vg), 2, v(t0))
    k.I("v_mul_u32_u24", v(t0), 288, v(t0))
    k.I("v_and_b32", v(t1), 3, v(vi))
    k.I("v_lshl_add_u32", v(t0), v(t1), 3, v(t0))
    k.I("v_add_u32", v(wa), XBUF, v(t0))
    vt["acc"] = R.a(72, 4)
    vt["fx"] = R.a(8, 4)
    vt["fw"] = R.a(36, 4)
    acc = vt["acc"]
    tmp = vt["fw"]

    lab_v = k.newlabel("vpath")
    lab_end = k.newlabel("gend")
    k.I("s_cmp_ge_u32", s(S_NT), 8)
    k.I("s_cbranch_scc1", lab_v)
    k.stampv("pre main")
    gemm_mainloop(k, R, "NS", 18, 1152, 3456, vt)
    k.stampv("post main")
    k.I("s_barrier")
    k.I("s_cmp_lt_u32", s(S_NT), 4)
    k.I("s_cselect_b32", s(S_C0), f32bits(QSCALE), f32bits(1.0))
    k.I("s_cselect_b32", s(S_C1), 0, "0x3F803F80")
    rb = t0
    k.I("v_lshlrev_b32", v(rb), 5, s(S_WAVE))
    k.I("v_add_u32", v(rb), v(rb), v(vi))
    k.I("v_mul_u32_u24", v(rb), 400, v(rb))
    for t in range(9):
        for j in range(2):
            nreg = t1
            k.I("v_lshlrev_b32", v(nreg), 2, v(vg))
            k.I("v_add_u32", v(nreg), 16 * t + 2 * j, v(nreg))
            k.I("v_mul_u32_u24", v(t2), 57, v(nreg))
            k.I("v_lshrrev_b32", v(t2), 10, v(t2))
            k.I("v_mul_u32_u24", v(t2), 12, v(t2))
            k.I("v_lshl_add_u32", v(t2), v(nreg), 1, v(t2))
            k.I("v_add_u32", v(t2), v(t2), v(rb))
            for st in range(2):
                a = acc + (st * 9 + t) * 4 + 2 * j
                d = tmp + ((t * 2 + j) * 2 + st) % 32
                k.I("v_mul_f32", v(a), s(S_C0), v(a))
                k.I("v_mul_f32", v(a + 1), s(S_C0), v(a + 1))
                k.I("v_cvt_pk_bf16_f32", v(d), v(a), v(a + 1))
                k.I("ds_write_b32", v(t2), v(d), mods="offset:%d" % (st * 6400))
    k.I("v_and_b32", v(t1), 127, "v0")
    k.I("v_mul_u32_u24", v(t1), 400, v(t1))
    k.I("v_lshrrev_b32", v(t2), 7, "v0")
    k.I("v_mul_u32_u24", v(t2), 48, v(t2))
    k.I("v_add_u32", v(t1), v(t1), v(t2))
    k.I("v_mov_b32", v(tmp), s(S_C1))
    k.I("v_mov_b32", v(tmp + 1), 0)
    for i in range(4):
        k.I("ds_write_b32", v(t1), v(tmp), mods="offset:%d" % (36 + 96 * i))
        k.I("ds_write_b32", v(t1), v(tmp + 1), mods="offset:%d" % (40 + 96 * i))
        k.I("ds_write_b32", v(t1), v(tmp + 1), mods="offset:%d" % (44 + 96 * i))
    k.wait(lgkm=0)
    k.I("s_barrier")
    k.I("s_and_b32", s(S_H0), s(S_NT), 3)
    k.I("s_lshl_b32", s(S_H0), s(S_H0), 3)
    lab_k = k.newlabel("kpath")
    k.I("s_cmp_ge_u32", s(S_NT), 4)
    k.I("s_cbranch_scc1", lab_k)
    k.I("v_lshrrev_b32", v(t0), 2, "v0")
    k.I("v_and_b32", v(t1), 3, "v0")
    k.I("v_mul_u32_u24", v(t2), 400, v(t0))
    k.I("v_lshl_add_u32", v(t2), v(t1), 4, v(t2))
    k.I("v_lshlrev_b32", v(t0), 6, v(t0))
    k.I("v_lshl_add_u32", v(t0), v(t1), 4, v(t0))
    k.I("v_cmp_eq_u32", "vcc", 3, v(t1))
    k.I("s_lshl_b32", s(S_T0), s(S_H0), 11)
    k.I("s_add_u32", s(S_T0), s(S_T0), s(S_S0))
    k.I("s_lshl_b32", s(S_T0), s(S_T0), 6)
    k.I("s_add_u32", s(S_T0), s(S_T0), LY.QP_OFF)
    for it in range(16):
        hl, half = it >> 1, it & 1
        d = tmp + (it % 4) * 4
        k.I("ds_read_b128", vr(d, 4), v(t2), mods="offset:%d" % (half * 64 * 400 + hl * 48))
        for r in range(4):
            k.I("v_cndmask_b32", v(d + r), v(d + r), 0, "vcc") if False else k.I("v_cndmask_b32", v(d + r), v(d + r), "0", "vcc")
        k.I("s_add_u32", s(S_T1), s(S_T0), hl * 2048 * 64 + half * 64 * 64)
        k.I("buffer_store_dwordx4", vr(d, 4), v(t0), sr(S_WS, 4), s(S_T1), mods="offen")
    k.I("s_branch", lab_end)
    k.L(lab_k)
    k.I("s_lshr_b32", s(S_T0), s(S_S0), 8)
    k.I("s_lshl_b32", s(S_T1), s(S_H0), 3)
    k.I("s_add_u32", s(S_T0), s(S_T0), s(S_T1))
    k.I("s_mul_i32", s(S_T0), s(S_T0), LY.KVREC)
    k.I("s_and_b32", s(S_T1), s(S_S0), 255)
    k.I("s_mul_i32", s(S_T1), s(S_T1), 48)
    k.I("s_add_u32", s(S_T0), s(S_T0), s(S_T1))
    k.I("s_add_u32", s(S_T0), s(S_T0), LY.KV_OFF)
    la = [R.a() for _ in range(3)]
    ga = [R.a() for _ in range(3)]
    for j in range(3):
        k.I("v_add_u32", v(t0), 256 * j, "v0")
        k.I("v_cmp_le_u32", "vcc", 384, v(t0))
        k.I("v_cndmask_b32", v(t1), 0, 1, "vcc")
        k.I("v_mul_u32_u24", v(t2), 384, v(t1))
        k.I("v_sub_u32", v(t0), v(t0), v(t2))
        k.I("v_mul_u32_u24", v(t2), 171, v(t0))
        k.I("v_lshrrev_b32", v(t2), 9, v(t2))
        k.I("v_mul_u32_u24", v(la[j]), 400, v(t2))
        k.I("v_mul_u32_u24", v(t2), 3, v(t2))
        k.I("v_sub_u32", v(t2), v(t0), v(t2))
        k.I("v_lshl_add_u32", v(la[j]), v(t2), 4, v(la[j]))
        k.I("v_mul_u32_u24", v(t2), 48, v(t1))
        k.I("v_add_u32", v(la[j]), v(la[j]), v(t2))
        k.I("s_mov_b32", s(S_T1), 8 * LY.KVREC)
        k.I("v_mul_lo_u32", v(ga[j]), v(t1), s(S_T1))
        k.I("v_lshl_add_u32", v(ga[j]), v(t0), 4, v(ga[j]))
    for hp2 in range(4):
        for j in range(3):
            d = tmp + ((hp2 * 3 + j) % 4) * 4
            k.I("ds_read_b128", vr(d, 4), v(la[j]), mods="offset:%d" % (hp2 * 96))
            k.I("s_add_u32", s(S_T1), s(S_T0), hp2 * 2 * 8 * LY.KVREC)
            k.I("buffer_store_dwordx4", vr(d, 4), v(ga[j]), sr(S_WS, 4), s(S_T1), mods="offen")
    k.I("s_branch", lab_end)

    k.L(lab_v)
    gemm_mainloop(k, R, "SN", 18, 1152, 3456, vt)
    k.I("s_barrier")
    VP = 272
    k.I("v_and_b32", v(t0), 1, v(vg))
    k.I("v_lshlrev_b32", v(t0), 3, v(t0))
    k.I("v_and_b32", v(t1), 2, v(vg))
    k.I("v_lshl_add_u32", v(t0), v(t1), 1, v(t0))
    k.I("v_lshl_add_u32", v(t0), s(S_WAVE), 5, v(t0))
    k.I("v_lshlrev_b32", v(t0), 1, v(t0))
    k.I("v_mul_u32_u24", v(t1), VP, v(vi))
    k.I("v_add_u32", v(t0), v(t0), v(t1))
    for st in range(2):
        for t in range(9):
            a = acc + (st * 9 + t) * 4
            d = tmp + ((st * 9 + t) % 16) * 2
            k.I("v_cvt_pk_bf16_f32", v(d), v(a), v(a + 1))
            k.I("v_cvt_pk_bf16_f32", v(d + 1), v(a + 2), v(a + 3))
            k.I("ds_write_b64", v(t0), vr(d, 2), mods="offset:%d" % (t * 16 * VP + st * 32))
    k.wait(lgkm=0)
    k.I("s_barrier")
    k.I("s_and_b32", s(S_H0), s(S_NT), 3)
    k.I("s_lshl_b32", s(S_H0), s(S_H0), 3)
    k.I("s_lshr_b32", s(S_T0), s(S_S0), 8)
    k.I("s_lshl_b32", s(S_T1), s(S_H0), 3)
    k.I("s_add_u32", s(S_T0), s(S_T0), s(S_T1))
    k.I("s_mul_i32", s(S_T0), s(S_T0), LY.KVREC)
    k.I("s_and_b32", s(S_T1), s(S_S0), 255)
    k.I("s_lshl_b32", s(S_T1), s(S_T1), 1)
    k.I("s_add_u32", s(S_T0), s(S_T0), s(S_T1))
    k.I("s_add_u32", s(S_T0), s(S_T0), LY.KV_OFF + LY.KPART)
    k.I("v_lshrrev_b32", v(t0), 4, "v0")
    k.I("v_and_b32", v(t1), 15, "v0")
    k.I("v_lshlrev_b32", v(t1), 4, v(t1))
    k.I("s_mov_b32", s(S_T2), 8 * LY.KVREC)
    for it in range(9):
        d = tmp + (it % 4) * 4
        la_, ga_ = tmp + 16, tmp + 17
        k.I("v_add_u32", v(t2), 16 * it, v(t0))
        k.I("v_mul_u32_u24", v(la_), VP, v(t2))
        k.I("v_add_u32", v(la_), v(la_), v(t1))
        k.I("ds_read_b128", vr(d, 4), v(la_))
        k.I("v_mul_u32_u24", v(ga_), 57, v(t2))
        k.I("v_lshrrev_b32", v(ga_), 10, v(ga_))
        k.I("v_mul_u32_u24", v(la_), 18, v(ga_))
        k.I("v_sub_u32", v(t2), v(t2), v(la_))
        k.I("v_mul_lo_u32", v(ga_), v(ga_), s(S_T2))
        k.I("v_mul_u32_u24", v(t2), LY.VPITCH, v(t2))
        k.I("v_add_u32", v(ga_), v(ga_), v(t2))
        k.I("v_add_u32", v(ga_), v(ga_), v(t1))
        k.I("buffer_store_dwordx4", vr(d, 4), v(ga_), sr(S_WS, 4), s(S_T0), mods="offen")
    k.I("v_cmp_gt_u32", "vcc", 128, "v0")
    k.I("s_and_saveexec_b64", sr(S_SAVE, 2), "vcc")
    k.I("v_mul_lo_u32", v(t2), v(t0), s(S_T2))
    k.I("v_add_u32", v(t2), 18 * LY.VPITCH, v(t2))
    k.I("v_add_u32", v(t2), v(t2), v(t1))
    for r in range(4):
        k.I("v_mov_b32", v(tmp + r), "0x3F803F80")
    k.I("buffer_store_dwordx4", vr(tmp, 4), v(t2), sr(S_WS, 4), s(S_T0), mods="offen")
    k.I("s_mov_b64", "exec", sr(S_SAVE, 2))
    k.L(lab_end)
    k.wait(vm=0)
    if prof:
        k.stampv("end")
        lx = k.newlabel("nodump")
        k.I("s_cmp_lg_u32", "s2", 0)
        k.I("s_cbranch_scc1", lx)
        k.I("s_cmp_lg_u32", s(S_WAVE), 0)
        k.I("s_cbranch_scc1", lx)
        k.stampv_dump(t0)
        k.L(lx)
        k.sv_reg = None
    k.I("s_endpgm")


INV2PI = 0.15915494309189535


def bf16_round_f32(k, dst, src, tmp):
    k.I("v_cvt_pk_bf16_f32", v(tmp), v(src), v(src))
    k.I("v_lshlrev_b32", v(dst), 16, v(tmp))


def role_gate(k):
    R = RA(1)
    k.C("---- role: gate ----")
    vl = R.a(); t0 = R.a(); t1 = R.a(); t2 = R.a()
    gw = R.a(9); xv = R.a(9); accv = R.a(); res = R.a()
    k.I("v_and_b32", v(vl), 63, "v0")
    k.I("v_lshrrev_b32", v(t0), 6, "v0")
    k.I("v_readfirstlane_b32", s(S_WAVE), v(t0))
    k.I("v_lshlrev_b32", v(t0), 1, v(vl))
    for j in range(9):
        k.I("buffer_load_ushort", v(gw + j), v(t0), sr(S_W, 4), 0, mods="offen offset:%d" % (128 * j))
    k.I("s_sub_u32", s(S_T0), "s2", 1056)
    k.I("s_lshl_b32", s(S_T0), s(S_T0), 5)
    k.I("s_lshl_b32", s(S_T1), s(S_WAVE), 3)
    k.I("s_add_u32", s(S_T0), s(S_T0), s(S_T1))
    k.I("s_mul_i32", s(S_T2), s(S_T0), 1152)
    k.I("v_mov_b32", v(res), 0)
    for j in range(9):
        k.I("v_lshlrev_b32", v(gw + j), 16, v(gw + j))
    for r in range(8):
        for j in range(9):
            k.I("buffer_load_ushort", v(xv + j), v(t0), sr(S_X, 4), s(S_T2), mods="offen offset:%d" % (128 * j))
        k.I("s_add_u32", s(S_T2), s(S_T2), 1152)
        k.I("v_mov_b32", v(accv), 0)
        for j in range(9):
            k.I("v_lshlrev_b32", v(t1), 16, v(xv + j))
            k.I("v_mul_f32", v(t1), v(t1), v(gw + j))
            k.I("v_cvt_pk_bf16_f32", v(t1), v(t1), v(t1))
            k.I("v_lshlrev_b32", v(t1), 16, v(t1))
            k.I("v_add_f32", v(accv), v(accv), v(t1))
        k.I("v_add_f32", v(accv), v(accv), v(accv), mods="quad_perm:[1,0,3,2] row_mask:0xf bank_mask:0xf")
        k.I("v_add_f32", v(accv), v(accv), v(accv), mods="quad_perm:[2,3,0,1] row_mask:0xf bank_mask:0xf")
        k.I("v_add_f32", v(accv), v(accv), v(accv), mods="row_half_mirror row_mask:0xf bank_mask:0xf")
        k.I("v_add_f32", v(accv), v(accv), v(accv), mods="row_mirror row_mask:0xf bank_mask:0xf")
        k.I("v_readlane_b32", s(S_T1), v(accv), 0)
        k.I("v_readlane_b32", s(S_T3), v(accv), 16)
        k.I("v_readlane_b32", s(S_C0), v(accv), 32)
        k.I("v_readlane_b32", s(S_C1), v(accv), 48)
        k.I("v_mov_b32", v(t1), s(S_T1))
        k.I("v_add_f32", v(t1), s(S_T3), v(t1))
        k.I("v_add_f32", v(t1), s(S_C0), v(t1))
        k.I("v_add_f32", v(t1), s(S_C1), v(t1))
        k.I("v_cmp_eq_u32", "vcc", r, v(vl))
        k.I("v_cndmask_b32", v(res), v(res), v(t1), "vcc")
    bf16_round_f32(k, res, res, t1)
    k.I("v_mul_f32", v(t1), f32bits(-LOG2E), v(res))
    k.I("v_exp_f32", v(t1), v(t1))
    k.I("v_add_f32", v(t1), 1.0, v(t1))
    k.I("v_rcp_f32", v(t1), v(t1))
    bf16_round_f32(k, t1, t1, t2)
    k.I("v_cmp_gt_u32", "vcc", 8, v(vl))
    k.I("s_and_saveexec_b64", sr(S_SAVE, 2), "vcc")
    k.I("s_lshl_b32", s(S_T0), s(S_T0), 2)
    k.I("s_add_u32", s(S_T0), s(S_T0), LY.G_OFF)
    k.I("v_lshlrev_b32", v(t2), 2, v(vl))
    k.I("buffer_store_dword", v(t1), v(t2), sr(S_WS, 4), s(S_T0), mods="offen")
    k.I("s_mov_b64", "exec", sr(S_SAVE, 2))
    k.I("s_endpgm")


def role_xt(k):
    R = RA(1)
    k.C("---- role: x transpose ----")
    P = 144
    vl = R.a(); vi = R.a(); vg = R.a(); t0 = R.a(); t1 = R.a(); t2 = R.a()
    d0 = R.a(8, 4)
    k.I("v_and_b32", v(vl), 63, "v0")
    k.I("v_and_b32", v(vi), 15, "v0")
    k.I("v_lshrrev_b32", v(vg), 4, v(vl))
    k.I("v_lshrrev_b32", v(t0), 6, "v0")
    k.I("v_readfirstlane_b32", s(S_WAVE), v(t0))
    k.I("s_sub_u32", s(S_T0), "s2", 768)
    k.I("s_and_b32", s(S_MT), s(S_T0), 31)
    k.I("s_lshr_b32", s(S_NT), s(S_T0), 5)
    k.I("v_lshrrev_b32", v(t0), 3, "v0")
    k.I("v_and_b32", v(t1), 7, "v0")
    k.I("v_mul_u32_u24", v(t2), 1152, v(t0))
    k.I("v_lshl_add_u32", v(t2), v(t1), 4, v(t2))
    k.I("s_mul_i32", s(S_T1), s(S_MT), 64 * 1152)
    k.I("s_lshl_b32", s(S_T2), s(S_NT), 7)
    k.I("s_add_u32", s(S_T1), s(S_T1), s(S_T2))
    k.I("s_add_u32", s(S_T2), s(S_T1), 32 * 1152)
    k.I("buffer_load_dwordx4", vr(d0, 4), v(t2), sr(S_X, 4), s(S_T1), mods="offen")
    k.I("buffer_load_dwordx4", vr(d0 + 4, 4), v(t2), sr(S_X, 4), s(S_T2), mods="offen")
    k.I("v_mul_u32_u24", v(t0), P, v(t0))
    k.I("v_lshl_add_u32", v(t0), v(t1), 4, v(t0))
    k.I("ds_write_b128", v(t0), vr(d0, 4))
    k.I("ds_write_b128", v(t0), vr(d0 + 4, 4), mods="offset:%d" % (32 * P))
    k.wait(lgkm=0)
    k.I("s_barrier")
    k.I("v_lshrrev_b32", v(t0), 2, v(vi))
    k.I("v_lshl_add_u32", v(t0), v(vg), 3, v(t0))
    k.I("v_mul_u32_u24", v(t0), P, v(t0))
    k.I("v_and_b32", v(t1), 3, v(vi))
    k.I("v_lshl_add_u32", v(t0), v(t1), 3, v(t0))
    k.I("s_lshl_b32", s(S_T1), s(S_WAVE), 5)
    k.I("v_add_u32", v(t0), s(S_T1), v(t0))
    for half in range(2):
        for q in range(2):
            k.I("ds_read_b64_tr_b16", vr(d0 + half * 4 + q * 2, 2), v(t0), mods="offset:%d" % ((32 * half + 4 * q) * P))
    k.I("v_lshlrev_b32", v(t1), 12, v(vi))
    k.I("v_lshl_add_u32", v(t1), v(vg), 4, v(t1))
    k.I("s_lshl_b32", s(S_T1), s(S_NT), 6)
    k.I("s_lshl_b32", s(S_T2), s(S_WAVE), 4)
    k.I("s_add_u32", s(S_T1), s(S_T1), s(S_T2))
    k.I("s_lshl_b32", s(S_T1), s(S_T1), 12)
    k.I("s_lshl_b32", s(S_T2), s(S_MT), 7)
    k.I("s_add_u32", s(S_T1), s(S_T1), s(S_T2))
    k.I("s_add_u32", s(S_T1), s(S_T1), LY.XT_OFF)
    k.I("buffer_store_dwordx4", vr(d0, 4), v(t1), sr(S_WS, 4), s(S_T1), mods="offen")
    k.I("buffer_store_dwordx4", vr(d0 + 4, 4), v(t1), sr(S_WS, 4), s(S_T1), mods="offen offset:64")
    k.I("s_endpgm")


def role_kgen(k):
    R = RA(1)
    k.C("---- role: S4D kernel table generation ----")
    vl = R.a(); vi = R.a(); vg = R.a()
    t = [R.a() for _ in range(12)]
    prm = R.a(4, 4)
    pc = R.a(); pf = R.a()
    acc = R.a(4, 4)
    Ah = R.a(4, 4); Al = R.a(4, 4); Bh = R.a(4, 4); Bl = R.a(4, 4)
    k.I("v_and_b32", v(vl), 63, "v0")
    k.I("v_and_b32", v(vi), 15, "v0")
    k.I("v_lshrrev_b32", v(vg), 4, v(vl))
    k.I("v_lshrrev_b32", v(t[0]), 6, "v0")
    k.I("v_readfirstlane_b32", s(S_WAVE), v(t[0]))
    k.I("s_sub_u32", s(S_MT), "s2", 192)
    k.I("v_and_b32", v(t[0]), 127, "v0")
    k.I("v_lshlrev_b32", v(t[0]), 1, v(t[0]))
    k.I("s_lshl_b32", s(S_T0), s(S_MT), 8)
    for j, srd in enumerate((44, 48, 52, 56)):
        k.I("buffer_load_ushort", v(t[1 + j]), v(t[0]), sr(srd, 4), s(S_T0), mods="offen")
    k.I("s_lshl_b32", s(S_T1), s(S_MT), 1)
    k.I("v_mov_b32", v(t[5]), 0)
    k.I("buffer_load_ushort", v(t[5]), v(t[5]), sr(60, 4), s(S_T1), mods="offen")
    for j in range(1, 6):
        k.I("v_lshlrev_b32", v(t[j]), 16, v(t[j]))
    k.I("v_mul_f32", v(t[5]), f32bits(LOG2E), v(t[5]))
    k.I("v_exp_f32", v(t[5]), v(t[5]))
    bf16_round_f32(k, t[5], t[5], t[6])
    k.I("v_mul_f32", v(t[1]), f32bits(LOG2E), v(t[1]))
    k.I("v_exp_f32", v(t[1]), v(t[1]))
    bf16_round_f32(k, t[1], t[1], t[6])
    k.I("v_mul_f32", v(prm), v(t[1]), v(t[5]))
    k.I("v_mul_f32", v(prm), f32bits(-LOG2E), v(prm))
    k.I("v_mul_f32", v(prm + 1), v(t[2]), v(t[5]))
    k.I("v_mul_f32", v(prm + 1), f32bits(INV2PI), v(prm + 1))
    k.I("v_mul_f32", v(prm + 2), v(t[3]), v(t[5]))
    k.I("v_add_f32", v(prm + 2), v(prm + 2), v(prm + 2))
    k.I("v_mul_f32", v(prm + 3), v(t[4]), v(t[5]))
    k.I("v_add_f32", v(prm + 3), v(prm + 3), v(prm + 3))
    k.I("v_lshlrev_b32", v(t[0]), 3, v(t[0]))
    k.I("ds_write_b128", v(t[0]), vr(prm, 4))
    k.wait(lgkm=0)
    k.I("s_barrier")
    pcs = [pc, R.a(), R.a()]
    k.I("v_lshlrev_b32", v(pf), 3, v(vi))
    k.I("v_lshrrev_b32", v(t[0]), 3, v(vi))
    k.I("v_lshlrev_b32", v(t[0]), 7, v(t[0]))
    k.I("v_and_b32", v(t[1]), 7, v(vi))
    k.I("v_add_u32", v(pcs[0]), v(t[0]), v(t[1]))
    k.I("v_lshrrev_b32", v(t[0]), 2, v(vi))
    k.I("v_lshlrev_b32", v(t[0]), 7, v(t[0]))
    k.I("v_and_b32", v(t[1]), 3, v(vi))
    k.I("v_lshl_add_u32", v(t[0]), v(t[1]), 1, v(t[0]))
    k.I("v_add_u32", v(t[0]), 256, v(t[0]))
    k.I("v_lshrrev_b32", v(t[1]), 1, v(vi))
    k.I("v_lshlrev_b32", v(t[1]), 7, v(t[1]))
    k.I("v_and_b32", v(t[2]), 1, v(vi))
    k.I("v_lshl_add_u32", v(t[1]), v(t[2]), 2, v(t[1]))
    k.I("v_cmp_gt_u32", "vcc", 8, v(vi))
    k.I("v_cndmask_b32", v(pcs[1]), v(t[1]), v(t[0]), "vcc")
    k.I("v_lshlrev_b32", v(pcs[2]), 7, v(vi))
    k.I("v_add_u32", v(pcs[2]), 1024, v(pcs[2]))
    for r in [pf] + pcs:
        k.I("v_cvt_f32_u32", v(r), v(r))
    accs = [acc, R.a(4, 4), R.a(4, 4)]
    for a_ in accs:
        for r in range(4):
            k.I("v_mov_b32", v(a_ + r), 0)
    pa = R.a()
    k.I("v_lshlrev_b32", v(pa), 6, v(vg))
    k.I("s_lshl_b32", s(S_T0), s(S_WAVE), 9)
    k.I("v_add_u32", v(pa), s(S_T0), v(pa))
    P = [R.a(4, 4) for _ in range(4)]

    def cexp(pos, pr, er, ei, tm):
        k.I("v_mul_f32", v(er), v(pr), v(pos))
        k.I("v_exp_f32", v(er), v(er))
        k.I("v_mul_f32", v(tm), v(pr + 1), v(pos))
        k.I("v_fract_f32", v(tm), v(tm))
        k.I("v_sin_f32", v(ei), v(tm))
        k.I("v_cos_f32", v(tm), v(tm))
        k.I("v_mul_f32", v(ei), v(er), v(ei))
        k.I("v_mul_f32", v(er), v(er), v(tm))

    def split(hi, lo, a, b, ta, tb):
        k.I("v_cvt_pk_bf16_f32", v(hi), v(a), v(b))
        k.I("v_lshlrev_b32", v(ta), 16, v(hi))
        k.I("v_and_b32", v(tb), "0xffff0000", v(hi))
        k.I("v_sub_f32", v(ta), v(a), v(ta))
        k.I("v_sub_f32", v(tb), v(b), v(tb))
        k.I("v_cvt_pk_bf16_f32", v(lo), v(ta), v(tb))

    for m in range(2):
        for q in range(4):
            k.I("ds_read_b128", vr(P[q], 4), v(pa), mods="offset:%d" % ((16 * m + q) * 16))
        for q in range(4):
            fr, fi = t[7], t[8]
            cexp(pf, P[q], fr, fi, t[9])
            split(Bh + q, Bl + q, fr, fi, t[10], t[11])
        for tl in range(3):
            for q in range(4):
                pr = P[q]
                er, ei, tm, gr, gi = t[0], t[1], t[2], t[3], t[4]
                cexp(pcs[tl], pr, er, ei, tm)
                k.I("v_mul_f32", v(gr), v(pr + 2), v(er))
                k.I("v_fma_f32", v(gr), "-" + v(pr + 3), v(ei), v(gr))
                k.I("v_mul_f32", v(gi), v(pr + 2), v(ei))
                k.I("v_fma_f32", v(gi), v(pr + 3), v(er), v(gi))
                k.I("v_sub_f32", v(gi), 0, v(gi))
                split(Ah + q, Al + q, gr, gi, t[5], t[6])
            a_ = accs[tl]
            k.I("v_mfma_f32_16x16x32_bf16", vr(a_, 4), vr(Ah, 4), vr(Bh, 4), vr(a_, 4))
            k.I("v_mfma_f32_16x16x32_bf16", vr(a_, 4), vr(Ah, 4), vr(Bl, 4), vr(a_, 4))
            k.I("v_mfma_f32_16x16x32_bf16", vr(a_, 4), vr(Al, 4), vr(Bh, 4), vr(a_, 4))
    TB = 2048
    PBK = 8192
    k.I("v_lshlrev_b32", v(t[0]), 4, v(vl))
    k.I("s_mul_i32", s(S_T0), s(S_WAVE), 3072)
    k.I("v_add_u32", v(t[1]), s(S_T0), v(t[0]))
    for tl in range(3):
        k.I("ds_write_b128", v(t[1]), vr(accs[tl], 4), mods="offset:%d" % (PBK + 1024 * tl))
    k.wait(lgkm=0)
    k.I("s_barrier")
    lab_t3 = k.newlabel("kg_t3")
    k.I("s_cmp_ge_u32", s(S_WAVE), 3)
    k.I("s_cbranch_scc1", lab_t3)
    k.I("s_lshl_b32", s(S_T0), s(S_WAVE), 10)
    k.I("v_add_u32", v(t[1]), s(S_T0), v(t[0]))
    for w_ in range(4):
        k.I("ds_read_b128", vr(P[w_], 4), v(t[1]), mods="offset:%d" % (PBK + 3072 * w_))
    for r in range(4):
        k.I("v_add_f32", v(P[0] + r), v(P[0] + r), v(P[1] + r))
        k.I("v_add_f32", v(P[2] + r), v(P[2] + r), v(P[3] + r))
        k.I("v_add_f32", v(P[0] + r), v(P[0] + r), v(P[2] + r))
    ib = t[2]
    lab_t1 = k.newlabel("kg_t1"); lab_t2 = k.newlabel("kg_t2"); lab_tw = k.newlabel("kg_tw")
    inc = [t[3], t[4], t[5]]
    k.I("s_cmp_eq_u32", s(S_WAVE), 1)
    k.I("s_cbranch_scc1", lab_t1)
    k.I("s_cmp_eq_u32", s(S_WAVE), 2)
    k.I("s_cbranch_scc1", lab_t2)
    k.I("v_lshrrev_b32", v(ib), 1, v(vg))
    k.I("v_lshlrev_b32", v(ib), 7, v(ib))
    k.I("v_and_b32", v(t[6]), 1, v(vg))
    k.I("v_lshl_add_u32", v(ib), v(t[6]), 2, v(ib))
    k.I("v_lshl_add_u32", v(ib), v(vi), 3, v(ib))
    for r in range(3):
        k.I("v_mov_b32", v(inc[r]), 4 * (r + 1))
    k.I("s_branch", lab_tw)
    k.L(lab_t1)
    k.I("v_lshlrev_b32", v(ib), 6, v(vg))
    k.I("v_add_u32", v(ib), 256, v(ib))
    k.I("v_cmp_gt_u32", "vcc", 2, v(vg))
    k.I("v_cndmask_b32", v(t[6]), 1, 2, "vcc")
    k.I("v_lshlrev_b32", v(t[6]), v(t[6]), v(vi))
    k.I("v_add_u32", v(ib), v(ib), v(t[6]))
    k.I("v_mov_b32", v(inc[0]), 4)
    k.I("v_mov_b32", v(inc[1]), 128)
    k.I("v_cndmask_b32", v(inc[1]), v(inc[1]), 8, "vcc")
    k.I("v_mov_b32", v(t[6]), 132)
    k.I("v_cndmask_b32", v(inc[2]), v(t[6]), 12, "vcc")
    k.I("s_branch", lab_tw)
    k.L(lab_t2)
    k.I("v_lshlrev_b32", v(ib), 6, v(vg))
    k.I("v_add_u32", v(ib), 512, v(ib))
    k.I("v_add_u32", v(ib), v(ib), v(vi))
    for r in range(3):
        k.I("v_mov_b32", v(inc[r]), 64 * (r + 1))
    k.L(lab_tw)
    k.I("v_lshlrev_b32", v(ib), 2, v(ib))
    k.I("ds_write_b32", v(ib), v(P[0]), mods="offset:%d" % TB)
    for r in range(3):
        k.I("v_add_u32", v(inc[r]), v(inc[r]), v(ib))
        k.I("ds_write_b32", v(inc[r]), v(P[0] + r + 1), mods="offset:%d" % TB)
    k.L(lab_t3)
    k.wait(lgkm=0)
    k.I("s_barrier")
    w = R.a(9)
    E = R.a(4, 4); OD = R.a(4, 4)
    k.I("v_lshlrev_b32", v(t[0]), 3, "v0")
    k.I("v_sub_u32", v(t[0]), 2047, v(t[0]))
    for j in range(9):
        k.I("v_subrev_u32", v(t[1]), j, v(t[0]))
        if j == 8:
            k.I("v_max_i32", v(t[1]), 0, v(t[1]))
        k.I("v_cvt_f32_u32", v(t[3]), v(t[1]))
        k.I("v_cvt_pk_bf16_f32", v(t[3]), v(t[3]), v(t[3]))
        k.I("v_and_b32", v(t[3]), "0xffff", v(t[3]))
        k.I("v_subrev_u32", v(t[3]), 17024, v(t[3]))
        k.I("v_cmp_gt_u32", "vcc", 256, v(t[1]))
        k.I("v_cndmask_b32", v(t[3]), v(t[3]), v(t[1]), "vcc")
        k.I("v_lshlrev_b32", v(t[3]), 2, v(t[3]))
        k.I("ds_read_b32", v(w + j), v(t[3]), mods="offset:%d" % TB)
    k.I("v_cmp_gt_u32", "vcc", 8, v(t[0]))
    k.I("v_cndmask_b32", v(w + 8), v(w + 8), 0, "vcc")
    for i in range(4):
        k.I("v_cvt_pk_bf16_f32", v(E + i), v(w + 2 * i), v(w + 2 * i + 1))
        k.I("v_cvt_pk_bf16_f32", v(OD + i), v(w + 2 * i + 1), v(w + 2 * i + 2))
    k.I("s_mul_i32", s(S_T0), s(S_MT), LY.KRP)
    k.I("s_add_u32", s(S_T0), s(S_T0), LY.KR_OFF)
    k.I("v_lshlrev_b32", v(t[1]), 4, "v0")
    k.I("buffer_store_dwordx4", vr(E, 4), v(t[1]), sr(S_WS, 4), s(S_T0), mods="offen")
    k.I("s_add_u32", s(S_T1), s(S_T0), LY.KRV)
    k.I("buffer_store_dwordx4", vr(OD, 4), v(t[1]), sr(S_WS, 4), s(S_T1), mods="offen")
    for r in range(4):
        k.I("v_mov_b32", v(Ah + r), 0)
    k.I("v_mul_u32_u24", v(t[1]), LY.KRV, "v0")
    k.I("v_cmp_gt_u32", "vcc", 2, "v0")
    k.I("s_and_saveexec_b64", sr(S_SAVE, 2), "vcc")
    k.I("s_add_u32", s(S_T1), s(S_T0), 4096)
    k.I("buffer_store_dwordx4", vr(Ah, 4), v(t[1]), sr(S_WS, 4), s(S_T1), mods="offen")
    k.I("s_mov_b64", "exec", sr(S_SAVE, 2))
    k.I("s_endpgm")


def build_k1():
    k = Kernel("k1_kernel")
    prologue_ptrs(k, [(4, 0), (6, 8), (8, 104)])
    lab_kgen = k.newlabel("kgen")
    lab_xt = k.newlabel("xt")
    lab_gate = k.newlabel("gate")
    lab_exit = k.newlabel("exit")
    k.wait(lgkm=0)
    make_srd(k, S_X, 4, LY.S * LY.D * 2)
    make_srd(k, S_WS, 8, LY.WS_USED)
    k.I("s_cmp_ge_u32", "s2", 1120)
    k.I("s_cbranch_scc1", lab_exit)
    k.I("s_cmp_ge_u32", "s2", 1056)
    k.I("s_cbranch_scc1", lab_gate)
    k.I("s_cmp_ge_u32", "s2", 768)
    k.I("s_cbranch_scc1", lab_xt)
    k.I("s_cmp_ge_u32", "s2", 192)
    k.I("s_cbranch_scc1", lab_kgen)
    make_srd(k, S_W, 6, 576 * 1728 * 2)
    import os
    if os.environ.get("K1SKIP") == "gemm":
        k.I("s_endpgm")
    role_gemm1(k)
    k.L(lab_kgen)
    prologue_ptrs(k, [(44, 32), (48, 40), (52, 48), (56, 56), (60, 64)])
    k.wait(lgkm=0)
    for sd in (44, 48, 52, 56):
        k.I("s_mov_b32", s(sd + 2), 576 * 128 * 2)
        k.I("s_mov_b32", s(sd + 3), "0x00020000")
    k.I("s_mov_b32", s(62), 576 * 2)
    k.I("s_mov_b32", s(63), "0x00020000")
    role_kgen(k)
    k.L(lab_xt)
    role_xt(k)
    k.L(lab_gate)
    prologue_ptrs(k, [(4, 80)])
    k.wait(lgkm=0)
    make_srd(k, S_W, 4, 576 * 2)
    role_gate(k)
    k.L(lab_exit)
    k.I("s_endpgm")
    return k, dict(grid=1120, block=256, lds=LDS_K1)
```

```python
from asmlib import *
import layout as LY
from k1 import RA, f32bits, make_srd, prologue_ptrs

S_WS = 12
S_WAVE = 16
S_HEAD = 17
S_QT = 18
S_T0, S_T1, S_T2, S_T3 = 19, 20, 21, 22
S_BUF = 23
S_KVOFF = 24
S_CNT = 25
S_DELTA = 26
S_SAVE = 28
S_SAVE2 = 30

THR = 8.0
KVB = LY.KVREC


import os
EXPF = os.environ.get("EXPF", "")


def role_attn(k, prof=False):
    R = RA(1, 128)
    _I = k.I
    NB = [False]

    def kI(op, *a, **kw):
        if "noexp" in EXPF and op == "v_exp_f32":
            return None
        if "nocvt" in EXPF and op == "v_cvt_pk_bf16_f32":
            return None
        if "nomax" in EXPF and op in ("v_max3_f32",):
            return None
        if "nomfma" in EXPF and op.startswith("v_mfma"):
            return None
        if "nobr" in EXPF and op == "s_cbranch_vccnz":
            return None
        if "nolds" in EXPF and op.startswith("ds_read"):
            return None
        if "nobar" in EXPF and op == "s_barrier" and NB[0]:
            return None
        return _I(op, *a, **kw)
    k.I = kI
    k.C("---- role: attention ----")
    vl = R.a(); vq = R.a(); vh = R.a()
    t0 = R.a(); t1 = R.a(); t2 = R.a(); t3 = R.a()
    vdma = R.a(); ka = R.a(); va = R.a(); mneg = R.a()
    Q = R.a(8, 4)
    S2 = [R.a(16, 4), R.a(16, 4)]
    O = R.a(16, 4)
    KF = [R.a(8, 4), R.a(8, 4)]
    VF = [R.a(8, 4), R.a(8, 4)]
    P = R.a(8, 4)
    mx = R.a(8)
    if prof:
        vsr = R.a()
        k.stampv_init(vsr, 64)
        k.stampv("start")
    k.I("v_and_b32", v(vl), 63, "v0")
    k.I("v_and_b32", v(vq), 31, "v0")
    k.I("v_bfe_u32", v(vh), "v0", 5, 1)
    k.I("v_lshrrev_b32", v(t0), 6, "v0")
    k.I("v_readfirstlane_b32", s(S_WAVE), v(t0))
    k.I("s_and_b32", s(S_T0), "s2", 7)
    k.I("s_lshl_b32", s(S_T0), s(S_T0), 2)
    k.I("s_lshr_b32", s(S_T1), "s2", 3)
    k.I("s_and_b32", s(S_T1), s(S_T1), 3)
    k.I("s_add_u32", s(S_HEAD), s(S_T0), s(S_T1))
    k.I("s_lshr_b32", s(S_QT), "s2", 5)
    k.I("v_lshlrev_b32", v(vdma), 4, v(vl))
    k.I("s_lshl_b32", s(S_T0), s(S_WAVE), 10)
    k.I("v_add_u32", v(vdma), s(S_T0), v(vdma))
    k.I("s_mul_i32", s(S_KVOFF), s(S_HEAD), 8 * LY.KVREC)
    k.I("s_add_u32", s(S_KVOFF), s(S_KVOFF), LY.KV_OFF)
    k.I("s_mov_b32", s(S_BUF), s(S_T0))
    S_W1K = S_SAVE2
    k.I("s_mov_b32", s(S_W1K), s(S_T0))

    def issue_dma():
        for i in range(2):
            k.I("s_add_u32", "m0", s(S_BUF), i * 8192)
            k.I("s_add_u32", s(S_T1), s(S_KVOFF), i * 8192)
            k.I("buffer_load_dwordx4", v(vdma), sr(S_WS, 4), s(S_T1), mods="offen lds")
        lab = k.newlabel("skipd")
        k.I("s_cmp_ge_u32", s(S_WAVE), 6)
        k.I("s_cbranch_scc1", lab)
        k.I("s_add_u32", "m0", s(S_BUF), 2 * 8192)
        k.I("s_add_u32", s(S_T1), s(S_KVOFF), 2 * 8192)
        k.I("buffer_load_dwordx4", v(vdma), sr(S_WS, 4), s(S_T1), mods="offen lds")
        k.L(lab)
        k.I("s_add_u32", s(S_KVOFF), s(S_KVOFF), LY.KVREC)
        k.I("s_add_u32", s(S_BUF), s(S_BUF), KVB)
        k.I("s_add_u32", s(S_T1), s(S_W1K), 3 * KVB)
        k.I("s_cmp_ge_u32", s(S_BUF), s(S_T1))
        k.I("s_cselect_b32", s(S_BUF), s(S_W1K), s(S_BUF))

    S_KV0 = S_SAVE2 + 1
    k.I("s_mov_b32", s(S_KV0), s(S_KVOFF))
    issue_dma()
    issue_dma()
    k.I("s_lshl_b32", s(S_T0), s(S_HEAD), 11)
    k.I("s_lshl_b32", s(S_T1), s(S_QT), 8)
    k.I("s_add_u32", s(S_T0), s(S_T0), s(S_T1))
    k.I("s_lshl_b32", s(S_T1), s(S_WAVE), 5)
    k.I("s_add_u32", s(S_T0), s(S_T0), s(S_T1))
    k.I("s_lshl_b32", s(S_T0), s(S_T0), 6)
    k.I("s_add_u32", s(S_T0), s(S_T0), LY.QP_OFF)
    k.I("v_lshlrev_b32", v(t0), 6, v(vq))
    k.I("v_lshl_add_u32", v(t0), v(vh), 4, v(t0))
    k.I("buffer_load_dwordx4", vr(Q, 4), v(t0), sr(S_WS, 4), s(S_T0), mods="offen")
    k.I("buffer_load_dwordx4", vr(Q + 4, 4), v(t0), sr(S_WS, 4), s(S_T0), mods="offen offset:32")

    def lds_addrs():
        k.I("v_mul_u32_u24", v(ka), 48, v(vq))
        k.I("v_lshl_add_u32", v(ka), v(vh), 4, v(ka))
        k.I("v_mul_u32_u24", v(va), LY.VPITCH, v(vq))
        k.I("v_lshl_add_u32", v(va), v(vh), 4, v(va))
        k.I("v_add_u32", v(va), LY.KPART, v(va))
    lds_addrs()
    for i in range(16):
        k.I("v_mov_b32", v(O + i), 0)
    k.wait(vm=0)
    k.I("s_barrier")

    def read_kf(dst, blk):
        k.I("ds_read_b128", vr(dst, 4), v(ka), mods="offset:%d" % (blk * 1536))
        k.I("ds_read_b128", vr(dst + 4, 4), v(ka), mods="offset:%d" % (blk * 1536 + 32))

    def read_vf(dst, blk):
        k.I("ds_read_b128", vr(dst, 4), v(va), mods="offset:%d" % (blk * 64))
        k.I("ds_read_b128", vr(dst + 4, 4), v(va), mods="offset:%d" % (blk * 64 + 32))

    def qk1(S, kf):
        k.I("v_mfma_f32_32x32x16_bf16", vr(S, 16), vr(kf, 4), vr(Q, 4), 0)

    def qk2(S, kf):
        k.I("v_mfma_f32_32x32x16_bf16", vr(S, 16), vr(kf + 4, 4), vr(Q + 4, 4), vr(S, 16))

    def maxtree(S):
        k.I("v_max3_f32", v(mx), v(S), v(S + 1), v(S + 2))
        k.I("v_max3_f32", v(mx + 1), v(S + 3), v(S + 4), v(S + 5))
        k.I("v_max3_f32", v(mx + 2), v(S + 6), v(S + 7), v(S + 8))
        k.I("v_max3_f32", v(mx + 3), v(S + 9), v(S + 10), v(S + 11))
        k.I("v_max3_f32", v(mx + 4), v(S + 12), v(S + 13), v(S + 14))
        k.I("v_max3_f32", v(mx), v(mx), v(mx + 1), v(S + 15))
        k.I("v_max3_f32", v(mx + 2), v(mx + 2), v(mx + 3), v(mx + 4))
        k.I("v_max_f32", v(mx), v(mx), v(mx + 2))

    def both_halves_max():
        k.I("v_mov_b32", v(mx + 1), v(mx))
        k.I("v_permlane32_swap_b32", v(mx), v(mx + 1))
        k.I("v_max_f32", v(mx), v(mx), v(mx + 1))

    def set_m(xr):
        k.I("v_cvt_pk_bf16_f32", v(t2), v(xr), v(xr))
        k.I("v_lshlrev_b32", v(t3), 16, v(t2))
        k.I("v_sub_f32", v(xr), v(xr), v(t3))
        k.I("v_cvt_pk_bf16_f32", v(t2), v(t3), v(xr))
        k.I("v_and_b32", v(xr), "0xffff0000", v(t2))
        k.I("v_add_f32", v(xr), v(xr), v(t3))
        k.I("v_cmp_eq_u32", "vcc", 0, v(vh))
        k.I("v_cndmask_b32", v(Q + 5), v(Q + 5), v(t2), "vcc")

    def attn_pass(safe):
        slow = []
        read_kf(KF[0], 0)
        read_kf(KF[1], 1)
        read_vf(VF[0], 0)
        if safe:
            k.I("v_cmp_eq_u32", "vcc", 0, v(vh))
            k.I("v_mov_b32", v(t2), 0)
            k.I("v_cndmask_b32", v(Q + 5), v(Q + 5), v(t2), "vcc")
        qk1(S2[0], KF[0]); qk2(S2[0], KF[0])
        maxtree(S2[0])
        both_halves_max()
        k.I("v_sub_f32", v(mneg), 0, v(mx))
        set_m(mneg)
        qk1(S2[0], KF[0]); qk2(S2[0], KF[0])
        k.I("s_mov_b32", s(S_CNT), 0)
        k.I("s_mov_b32", s(S_DELTA), 0)
        lab_loop = k.newlabel("loop")
        k.L(lab_loop)
        NB[0] = True
        k.stampv("loop top")
        for blk in range(8):
            cur = blk & 1
            S, Sn = S2[cur], S2[cur ^ 1]
            if safe:
                maxtree(S)
                k.I("v_cmp_lt_f32", "vcc", f32bits(THR), v(mx))
                ls, lb = k.newlabel("slow"), k.newlabel("back")
                slow.append((ls, lb, S))
                k.I("s_cbranch_vccnz", ls)
                k.L(lb)
            qk1(Sn, KF[cur ^ 1])
            for i in range(4):
                k.I("v_exp_f32", v(S + i), v(S + i))
            qk2(Sn, KF[cur ^ 1])
            if blk == 6:
                k.wait(vm=0)
                k.I("s_barrier")
                lskip = k.newlabel("nodma")
                k.I("s_cmp_ge_u32", s(S_CNT), 6)
                k.I("s_cbranch_scc1", lskip)
                issue_dma()
                k.L(lskip)
                k.I("s_add_u32", s(S_DELTA), s(S_DELTA), 1)
                k.I("s_cmp_ge_u32", s(S_DELTA), 3)
                k.I("s_cselect_b32", s(S_DELTA), 0, s(S_DELTA))
                k.I("s_mov_b32", s(S_T0), KVB)
                k.I("s_cselect_b32", s(S_T0), -2 * KVB, s(S_T0))
                k.I("v_add_u32", v(ka), s(S_T0), v(ka))
            if blk == 7:
                k.I("v_add_u32", v(va), s(S_T0), v(va))
            read_kf(KF[cur], (blk + 2) & 7)
            read_vf(VF[cur ^ 1], (blk + 1) & 7)
            for i in range(4, 8):
                k.I("v_exp_f32", v(S + i), v(S + i))
            for i in range(4):
                k.I("v_cvt_pk_bf16_f32", v(P + i), v(S + 2 * i), v(S + 2 * i + 1))
            for i in range(8, 12):
                k.I("v_exp_f32", v(S + i), v(S + i))
            k.I("v_mfma_f32_32x32x16_bf16", vr(O, 16), vr(VF[cur], 4), vr(P, 4), vr(O, 16))
            for i in range(12, 16):
                k.I("v_exp_f32", v(S + i), v(S + i))
            for i in range(4, 8):
                k.I("v_cvt_pk_bf16_f32", v(P + i), v(S + 2 * i), v(S + 2 * i + 1))
            k.I("v_mfma_f32_32x32x16_bf16", vr(O, 16), vr(VF[cur] + 4, 4), vr(P + 4, 4), vr(O, 16))
            if blk in (0, 1):
                k.stampv("blk %d" % blk)
        k.I("s_add_u32", s(S_CNT), s(S_CNT), 1)
        k.I("s_cmp_lt_u32", s(S_CNT), int(os.environ.get("NCHK", "8")))
        k.I("s_cbranch_scc1", lab_loop)
        NB[0] = False
        return slow

    lab_done = k.newlabel("done")
    attn_pass(False)
    FLG = 3 * KVB
    k.I("s_mov_b32", s(S_T0), f32bits(2.0 ** 60))
    k.I("v_cmp_nlt_f32", "vcc", v(O + 10), s(S_T0))
    k.I("s_cmp_lg_u32", "vcc_lo", 0)
    k.I("s_cselect_b32", s(S_T0), 1, 0)
    k.I("v_mov_b32", v(t0), s(S_T0))
    k.I("s_lshl_b32", s(S_T1), s(S_WAVE), 2)
    k.I("s_add_u32", s(S_T1), s(S_T1), FLG)
    k.I("v_mov_b32", v(t1), s(S_T1))
    k.I("ds_write_b32", v(t1), v(t0))
    k.I("v_mov_b32", v(t1), FLG)
    k.wait(lgkm=0)
    k.I("s_barrier")
    k.I("ds_read_b128", vr(P, 4), v(t1))
    k.I("ds_read_b128", vr(P + 4, 4), v(t1), mods="offset:16")
    k.I("v_or3_b32", v(t0), v(P), v(P + 1), v(P + 2))
    k.I("v_or3_b32", v(t1), v(P + 3), v(P + 4), v(P + 5))
    k.I("v_or3_b32", v(t0), v(t0), v(P + 6), v(P + 7))
    k.I("v_or_b32", v(t0), v(t0), v(t1))
    k.I("v_readfirstlane_b32", s(S_T0), v(t0))
    k.I("s_cmp_eq_u32", s(S_T0), 0)
    k.I("s_cbranch_scc1", lab_done)
    if EXPF:
        _I("s_branch", lab_done)
    k.I("s_mov_b32", s(S_KVOFF), s(S_KV0))
    k.I("s_mov_b32", s(S_BUF), s(S_W1K))
    issue_dma()
    issue_dma()
    lds_addrs()
    for i in range(16):
        k.I("v_mov_b32", v(O + i), 0)
    k.wait(vm=0)
    k.I("s_barrier")
    slow = attn_pass(True)
    k.I("s_branch", lab_done)

    for (ls, lb, S) in slow:
        k.L(ls)
        both_halves_max()
        k.I("v_max_f32", v(mx), 0, v(mx))
        k.I("v_sub_f32", v(t1), v(mneg), v(mx))
        set_m(t1)
        k.I("v_sub_f32", v(mx), v(mneg), v(t1))
        k.I("v_mov_b32", v(mneg), v(t1))
        k.I("v_sub_f32", v(t0), 0, v(mx))
        k.I("v_exp_f32", v(t0), v(t0))
        for i in range(16):
            k.I("v_sub_f32", v(S + i), v(S + i), v(mx))
        for i in range(16):
            k.I("v_mul_f32", v(O + i), v(O + i), v(t0))
        k.I("s_branch", lb)

    k.L(lab_done)
    k.stampv("done")
    k.I("v_mov_b32", v(t0), v(O + 10))
    k.I("v_mov_b32", v(t1), v(O + 10))
    k.I("v_permlane32_swap_b32", v(t0), v(t1))
    k.I("v_rcp_f32", v(t0), v(t0))
    for i in range(10):
        k.I("v_mul_f32", v(O + i), v(O + i), v(t0))
    for i in range(5):
        k.I("v_cvt_pk_bf16_f32", v(P + i), v(O + 2 * i), v(O + 2 * i + 1))
    k.I("s_lshl_b32", s(S_T0), s(S_QT), 8)
    k.I("s_lshl_b32", s(S_T1), s(S_WAVE), 5)
    k.I("s_add_u32", s(S_T0), s(S_T0), s(S_T1))
    k.I("s_mul_i32", s(S_T0), s(S_T0), 1152)
    k.I("s_mul_i32", s(S_T1), s(S_HEAD), 36)
    k.I("s_add_u32", s(S_T0), s(S_T0), s(S_T1))
    k.I("s_add_u32", s(S_T0), s(S_T0), LY.O_OFF)
    k.I("v_mul_u32_u24", v(t1), 1152, v(vq))
    k.I("v_lshl_add_u32", v(t1), v(vh), 3, v(t1))
    for j, dd in enumerate((0, 2, 8, 10)):
        k.I("buffer_store_dword", v(P + j), v(t1), sr(S_WS, 4), s(S_T0), mods="offen offset:%d" % (dd * 2))
    k.I("v_cmp_eq_u32", "vcc", 0, v(vh))
    k.I("s_and_saveexec_b64", sr(S_SAVE, 2), "vcc")
    k.I("buffer_store_dword", v(P + 4), v(t1), sr(S_WS, 4), s(S_T0), mods="offen offset:32")
    k.I("s_mov_b64", "exec", sr(S_SAVE, 2))
    if prof:
        k.stampv("end")
        lx = k.newlabel("nodump")
        k.I("s_cmp_lg_u32", "s2", 100)
        k.I("s_cbranch_scc1", lx)
        k.I("s_cmp_lg_u32", s(S_WAVE), 0)
        k.I("s_cbranch_scc1", lx)
        k.stampv_dump(t0)
        k.L(lx)
    k.I("s_endpgm")


CS = 4416
UOFF = 8 * CS
PB = UOFF + 64 * 144
PSL = 528
PKQ = 16 * PSL
LDS_CONV = PB + 4 * PKQ
NCH = 4
S_CH = 17
S_DSK = 32
S_DS = 34
S_KR = 35
S_M0C = 36


def role_conv(k, prof=False):
    R = RA(1, 128)
    if prof:
        k.stamp_init(64)
    k.C("---- role: S4D conv ----")
    vl = R.a(); va_ = R.a(); vh = R.a()
    t = [R.a() for _ in range(8)]
    gl = R.a(4, 4)
    goff = R.a(); lwa = R.a(); vdma = R.a()
    acc = R.a(16, 4)
    AF = [R.a(4, 4) for _ in range(4)]
    BF = [R.a(4, 4) for _ in range(4)]
    VA = R.a(); VB = R.a()
    w = R.a(8, 4)
    E = R.a(4, 4); OD = R.a(4, 4); TQ = R.a(4, 4)
    pwa = R.a(); pra = R.a(); ura = R.a(); vst = R.a()
    k.I("v_and_b32", v(vl), 63, "v0")
    k.I("v_and_b32", v(va_), 31, "v0")
    k.I("v_bfe_u32", v(vh), "v0", 5, 1)
    k.I("v_lshrrev_b32", v(t[0]), 6, "v0")
    k.I("v_readfirstlane_b32", s(S_WAVE), v(t[0]))
    k.I("s_sub_u32", s(S_T0), "s2", 256)
    k.I("s_lshl_b32", s(S_CH), s(S_T0), 2)
    k.I("s_lshl_b32", s(S_T1), s(S_T0), 3)
    k.I("s_load_dwordx2", sr(S_DSK, 2), "s[4:5]", s(S_T1))
    k.I("v_lshlrev_b32", v(vdma), 4, v(vl))
    k.I("s_mul_i32", s(S_KR), s(S_CH), LY.KRP)
    k.I("s_and_b32", s(S_T1), s(S_WAVE), 1)
    k.I("s_mul_i32", s(S_T1), s(S_T1), LY.KRV)
    k.I("s_add_u32", s(S_KR), s(S_KR), s(S_T1))
    k.I("s_lshr_b32", s(S_T1), s(S_WAVE), 1)
    k.I("s_lshl_b32", s(S_T1), s(S_T1), 2)
    k.I("s_add_u32", s(S_KR), s(S_KR), s(S_T1))
    k.I("s_add_u32", s(S_KR), s(S_KR), LY.KR_OFF)
    k.I("s_mul_i32", s(S_M0C), s(S_WAVE), CS)
    k.I("v_cmp_le_u32", "vcc", 256, "v0")
    k.I("s_mov_b64", sr(S_SAVE2, 2), "vcc")
    k.I("v_subrev_u32", v(t[0]), 256, "v0")
    k.I("v_lshrrev_b32", v(t[1]), 3, v(t[0]))
    k.I("v_mul_u32_u24", v(t[1]), 144, v(t[1]))
    k.I("v_and_b32", v(t[2]), 7, v(t[0]))
    k.I("v_lshl_add_u32", v(t[1]), v(t[2]), 4, v(t[1]))
    k.I("v_add_u32", v(lwa), UOFF + 32 * 144, v(t[1]))
    k.I("v_lshlrev_b32", v(t[1]), 4, v(t[0]))
    k.I("s_lshl_b32", s(S_T1), s(S_CH), 12)
    k.I("s_add_u32", s(S_T1), s(S_T1), LY.XT_OFF)
    k.I("v_add_u32", v(goff), s(S_T1), v(t[1]))

    def prefetch():
        for i in range(4):
            k.I("s_add_u32", "m0", s(S_M0C), i * 1024)
            k.I("s_add_u32", s(S_T1), s(S_KR), i * 1024)
            k.I("buffer_load_dwordx4", v(vdma), sr(S_WS, 4), s(S_T1), mods="offen lds")
        k.I("s_add_u32", s(S_KR), s(S_KR), LY.KRP)
        k.I("s_mov_b64", sr(S_SAVE, 2), "exec")
        k.I("s_mov_b64", "exec", sr(S_SAVE2, 2))
        k.I("buffer_load_dwordx4", vr(gl, 4), v(goff), sr(S_WS, 4), 0, mods="offen")
        k.I("v_add_u32", v(goff), 4096, v(goff))
        k.I("s_mov_b64", "exec", sr(S_SAVE, 2))

    prefetch()
    for r in range(4):
        k.I("v_mov_b32", v(TQ + r), 0)
    k.I("v_cmp_gt_u32", "vcc", 288, "v0")
    k.I("s_and_saveexec_b64", sr(S_SAVE, 2), "vcc")
    k.I("v_lshlrev_b32", v(t[0]), 4, "v0")
    k.I("ds_write_b128", v(t[0]), vr(TQ, 4), mods="offset:%d" % UOFF)
    k.I("s_mov_b64", "exec", sr(S_SAVE, 2))
    k.I("v_cmp_gt_u32", "vcc", 144, "v0")
    k.I("s_and_saveexec_b64", sr(S_SAVE, 2), "vcc")
    k.I("v_mul_u32_u24", v(t[0]), 57, "v0")
    k.I("v_lshrrev_b32", v(t[0]), 10, v(t[0]))
    k.I("v_mul_u32_u24", v(t[1]), 18, v(t[0]))
    k.I("v_sub_u32", v(t[1]), "v0", v(t[1]))
    k.I("v_mul_u32_u24", v(t[0]), CS, v(t[0]))
    k.I("v_lshl_add_u32", v(t[0]), v(t[1]), 4, v(t[0]))
    k.I("ds_write_b128", v(t[0]), vr(TQ, 4), mods="offset:4096")
    k.I("s_mov_b64", "exec", sr(S_SAVE, 2))
    k.I("s_and_b32", s(S_T0), s(S_WAVE), 1)
    k.I("s_lshr_b32", s(S_T1), s(S_WAVE), 1)
    k.I("v_sub_u32", v(t[0]), 2047, v(va_))
    k.I("v_and_b32", v(t[1]), 7, v(t[0]))
    k.I("v_mul_u32_u24", v(t[1]), CS, v(t[1]))
    k.I("v_lshrrev_b32", v(t[0]), 3, v(t[0]))
    k.I("v_add_u32", v(t[0]), v(t[0]), v(vh))
    k.I("s_lshl_b32", s(S_T2), s(S_T0), 2)
    k.I("s_lshl_b32", s(S_T3), s(S_T1), 3)
    k.I("s_add_u32", s(S_T2), s(S_T2), s(S_T3))
    k.I("s_add_u32", s(S_T2), s(S_T2), 224)
    k.I("v_subrev_u32", v(t[0]), s(S_T2), v(t[0]))
    k.I("v_lshl_add_u32", v(VA), v(t[0]), 4, v(t[1]))
    k.I("s_sub_u32", s(S_T2), 4, s(S_T1))
    k.I("v_add_u32", v(t[0]), s(S_T2), v(va_))
    k.I("v_mul_u32_u24", v(t[0]), 144, v(t[0]))
    k.I("v_lshl_add_u32", v(t[0]), v(vh), 4, v(t[0]))
    k.I("v_add_u32", v(VB), UOFF, v(t[0]))
    k.I("s_mul_i32", s(S_T2), s(S_T1), PKQ)
    k.I("s_mul_i32", s(S_T3), s(S_T0), 8 * PSL)
    k.I("s_add_u32", s(S_T2), s(S_T2), s(S_T3))
    k.I("s_add_u32", s(S_T2), s(S_T2), PB)
    k.I("v_mul_u32_u24", v(t[0]), PSL, v(vh))
    k.I("v_lshl_add_u32", v(t[0]), v(va_), 4, v(t[0]))
    k.I("v_add_u32", v(pwa), s(S_T2), v(t[0]))
    k.I("v_and_b32", v(t[0]), 15, v(vl))
    k.I("v_lshrrev_b32", v(t[1]), 4, v(vl))
    k.I("s_lshl_b32", s(S_T2), s(S_WAVE), 2)
    k.I("v_add_u32", v(t[1]), s(S_T2), v(t[1]))
    k.I("v_mul_u32_u24", v(t[2]), PSL, v(t[0]))
    k.I("v_lshl_add_u32", v(t[2]), v(t[1]), 4, v(t[2]))
    k.I("v_add_u32", v(pra), PB, v(t[2]))
    k.I("v_mul_u32_u24", v(t[2]), 144, v(t[1]))
    k.I("v_lshl_add_u32", v(t[2]), v(t[0]), 3, v(t[2]))
    k.I("v_add_u32", v(ura), UOFF + 32 * 144, v(t[2]))
    k.I("v_lshlrev_b32", v(vst), 3, v(vl))
    k.I("s_lshl_b32", s(S_T3), s(S_CH), 12)
    k.I("s_lshl_b32", s(S_T2), s(S_WAVE), 9)
    k.I("s_add_u32", s(S_T3), s(S_T3), s(S_T2))
    k.I("s_add_u32", s(S_T3), s(S_T3), LY.B_OFF)
    k.wait(lgkm=0)

    for c in range(NCH):
        k.stamp('c%d start' % c)
        k.wait(vm=0)
        k.I("s_mov_b64", sr(S_SAVE, 2), "exec")
        k.I("s_mov_b64", "exec", sr(S_SAVE2, 2))
        k.I("ds_write_b128", v(lwa), vr(gl, 4))
        k.I("s_mov_b64", "exec", sr(S_SAVE, 2))
        k.wait(lgkm=0)
        k.I("s_barrier")
        k.stamp('c%d after fill' % c)
        k.I("ds_read_b64", vr(E, 2), v(ura))
        for r in range(16):
            k.I("v_mov_b32", v(acc + r), 0)
        steps = [(j, ks) for j in range(8) for ks in range(4)]

        def rd(idx):
            j, ks = steps[idx]
            k.I("ds_read_b128", vr(AF[idx % 4], 4), v(VA), mods="offset:%d" % (512 * (7 - j) + 32 * ks))
            k.I("ds_read_b128", vr(BF[idx % 4], 4), v(VB), mods="offset:%d" % ((28 - 4 * j) * 144 + 32 * ks))
        for i in range(3):
            rd(i)
        for i in range(len(steps)):
            if i + 3 < len(steps):
                rd(i + 3)
            k.I("v_mfma_f32_32x32x16_bf16", vr(acc, 16), vr(AF[i % 4], 4), vr(BF[i % 4], 4), vr(acc, 16))
        k.stamp('c%d after mfma' % c)
        for g in range(4):
            k.I("ds_write_b128", v(pwa), vr(acc + 4 * g, 4), mods="offset:%d" % (2 * g * PSL))
        k.wait(lgkm=0)
        k.I("s_barrier")
        k.stamp('c%d after partials' % c)
        if c + 1 < NCH:
            prefetch()
        for q in range(4):
            k.I("ds_read_b128", vr(AF[q], 4), v(pra), mods="offset:%d" % (q * PKQ))
        if c == 0:
            k.wait(lgkm=0)
        if c % 2 == 0:
            k.I("s_lshl_b32", s(S_DS), s(S_DSK + c // 2), 16)
        else:
            k.I("s_and_b32", s(S_DS), s(S_DSK + c // 2), "0xffff0000")
        k.I("v_lshlrev_b32", v(w + 4), 16, v(E))
        k.I("v_and_b32", v(w + 5), "0xffff0000", v(E))
        k.I("v_lshlrev_b32", v(w + 6), 16, v(E + 1))
        k.I("v_and_b32", v(w + 7), "0xffff0000", v(E + 1))
        for i in range(4):
            k.I("v_mul_f32", v(w + 4 + i), s(S_DS), v(w + 4 + i))
        k.I("v_cvt_pk_bf16_f32", v(OD + 2), v(w + 4), v(w + 5))
        k.I("v_cvt_pk_bf16_f32", v(OD + 3), v(w + 6), v(w + 7))
        for i in range(4):
            k.I("v_add_f32", v(w + i), v(AF[0] + i), v(AF[1] + i))
            k.I("v_add_f32", v(w + 4 + i), v(AF[2] + i), v(AF[3] + i))
            k.I("v_add_f32", v(w + i), v(w + i), v(w + 4 + i))
        k.I("v_cvt_pk_bf16_f32", v(OD), v(w), v(w + 1))
        k.I("v_cvt_pk_bf16_f32", v(OD + 1), v(w + 2), v(w + 3))
        for i in range(2):
            k.I("v_lshlrev_b32", v(t[2]), 16, v(OD + i))
            k.I("v_lshlrev_b32", v(t[3]), 16, v(OD + 2 + i))
            k.I("v_add_f32", v(t[2]), v(t[2]), v(t[3]))
            k.I("v_and_b32", v(t[3]), "0xffff0000", v(OD + i))
            k.I("v_and_b32", v(t[4]), "0xffff0000", v(OD + 2 + i))
            k.I("v_add_f32", v(t[3]), v(t[3]), v(t[4]))
            k.I("v_cvt_pk_bf16_f32", v(TQ + i), v(t[2]), v(t[3]))
        k.I("buffer_store_dwordx2", vr(TQ, 2), v(vst), sr(S_WS, 4), s(S_T3), mods="offen")
        k.I("s_add_u32", s(S_T3), s(S_T3), 4096)
    k.stamp('end ch')
    if prof:
        k.wait(vm=0)
        k.stamp('stored')
        lx = k.newlabel("nodump")
        k.I("s_cmp_lg_u32", "s2", 300)
        k.I("s_cbranch_scc1", lx)
        k.I("s_cmp_lg_u32", s(S_WAVE), 0)
        k.I("s_cbranch_scc1", lx)
        k.stamp_dump(t[0], t[1])
        k.L(lx)
    k.I("s_endpgm")


def build_k2(conv_only=False, prof=False):
    k = Kernel("k2_kernel")
    prologue_ptrs(k, [(8, 104), (4, 72)])
    lab_exit = k.newlabel("exit")
    lab_conv = k.newlabel("conv")
    k.wait(lgkm=0)
    make_srd(k, S_WS, 8, LY.WS_USED)
    k.I("s_cmp_ge_u32", "s2", 256 + 144)
    k.I("s_cbranch_scc1", lab_exit)
    k.I("s_cmp_ge_u32", "s2", 256)
    k.I("s_cbranch_scc1", lab_conv)
    if conv_only:
        k.I("s_endpgm")
    _I0 = k.I
    role_attn(k, prof == 'attn')
    k.I = _I0
    k.L(lab_conv)
    role_conv(k, prof == 'conv')
    k.L(lab_exit)
    k.I("s_endpgm")
    return k, dict(grid=400, block=512, lds=max(LDS_CONV, 3 * KVB))
```

```python
from asmlib import *
import layout as LY

LOG2E = 1.4426950408889634
QSCALE = (18 ** -0.5) * LOG2E


def f32bits(x):
    import struct
    return struct.unpack("<I", struct.pack("<f", x))[0]


class RA:
    def __init__(self, start, limit=256):
        self.n = start
        self.limit = limit

    def a(self, cnt=1, align=1):
        if cnt >= 4:
            align = max(align, 4)
        elif cnt == 2:
            align = max(align, 2)
        self.n = (self.n + align - 1) // align * align
        r = self.n
        self.n += cnt
        assert self.n <= self.limit, "out of registers"
        return r


S_X, S_W, S_WS = 12, 16, 20
S_WAVE = 24
S_XK, S_WKOFF = 25, 26
S_M0X, S_M0W = 27, 28
S_MT, S_NT = 29, 30
S_T0, S_T1, S_T2, S_T3 = 31, 32, 33, 34
S_SAVE = 36
S_H0 = 38
S_S0 = 39
S_C0, S_C1 = 40, 41

XBUF = 8192
WBUF = 9216
STG = XBUF + WBUF
NSTG = 3
LDS_K1 = NSTG * STG


def prologue_ptrs(k, slots):
    for sp, off in slots:
        k.I("s_load_dwordx2", sr(sp, 2), "s[0:1]", off)


def make_srd(k, sd, sp, nbytes):
    k.I("s_mov_b32", s(sd), s(sp))
    k.I("s_mov_b32", s(sd + 1), s(sp + 1))
    k.I("s_mov_b32", s(sd + 2), nbytes)
    k.I("s_mov_b32", s(sd + 3), "0x00020000")


def gemm_mainloop(k, R, orient, nkt, xrow_bytes, wrow_bytes, vt):
    acc = vt["acc"]
    xa = vt["xa"]
    wa = vt["wa"]
    xd = vt["xd"]
    wd = vt["wd"]
    fx = vt["fx"]
    fw = vt["fw"]
    for i in range(72):
        k.I("v_mov_b32", v(acc + i), 0)

    def issue_dma(buf):
        for j in range(2):
            k.I("s_add_u32", "m0", s(S_M0X), buf * STG + j * 1024)
            k.I("buffer_load_dwordx4", v(xd + j), sr(S_X, 4), s(S_XK), mods="offen lds")
        for i in range(2):
            k.I("s_add_u32", "m0", s(S_M0W), buf * STG + i * 4096)
            k.I("buffer_load_dwordx4", v(wd + i), sr(S_W, 4), s(S_WKOFF), mods="offen lds")
        lab = k.newlabel("skipw")
        k.I("s_cmp_ge_u32", s(S_WAVE), 1)
        k.I("s_cbranch_scc1", lab)
        k.I("s_add_u32", "m0", s(S_M0W), buf * STG + 2 * 4096)
        k.I("buffer_load_dwordx4", v(wd + 2), sr(S_W, 4), s(S_WKOFF), mods="offen lds")
        k.L(lab)
        k.I("s_add_u32", s(S_XK), s(S_XK), 64)
        k.I("s_add_u32", s(S_WKOFF), s(S_WKOFF), 32 * wrow_bytes)

    def mfmas(t):
        W = vr(fw + t * 4, 4)
        for st in range(2):
            X = vr(fx + st * 4, 4)
            A = vr(acc + (st * 9 + t) * 4, 4)
            if orient == "NS":
                k.I("v_mfma_f32_16x16x32_bf16", A, W, X, A)
            else:
                k.I("v_mfma_f32_16x16x32_bf16", A, X, W, A)

    issue_dma(0)
    issue_dma(1)
    S_IT = S_C1 + 1
    k.I("s_mov_b32", s(S_IT), 0)
    lab_loop = k.newlabel("gloop")
    k.L(lab_loop)
    for stg in range(3):
        buf = stg
        if stg == 2:
            lw = k.newlabel("gw")
            k.I("s_cmp_lt_u32", s(S_IT), nkt // 3 - 1)
            k.I("s_cbranch_scc1", lw)
            k.I("s_waitcnt", "vmcnt(0)")
            k.L(lw)
        k.I("s_waitcnt", "vmcnt(4)")
        k.I("s_barrier")
        if stg == 0:
            issue_dma(2)
        else:
            ld = k.newlabel("gd")
            k.I("s_cmp_ge_u32", s(S_IT), nkt // 3 - 1)
            k.I("s_cbranch_scc1", ld)
            issue_dma((stg + 2) % 3)
            k.L(ld)
        for st in range(2):
            for h in range(2):
                k.I("ds_read_b64", vr(fx + st * 4 + h * 2, 2), v(xa + h), mods="offset:%d" % (buf * STG + st * 1024))
        for t in range(9):
            for h in range(2):
                k.I("ds_read_b64_tr_b16", vr(fw + t * 4 + h * 2, 2), v(wa),
                    mods="offset:%d" % (buf * STG + h * 4608 + t * 32))
        for t in range(9):
            mfmas(t)
    k.I("s_add_u32", s(S_IT), s(S_IT), 1)
    k.I("s_cmp_lt_u32", s(S_IT), nkt // 3)
    k.I("s_cbranch_scc1", lab_loop)
    return acc


def role_gemm1(k):
    R = RA(1)
    vt = {}
    k.C("---- role: QKV GEMM ----")
    import os
    prof = bool(os.environ.get("K1PROF"))
    if prof:
        vsr = R.a()
        k.stampv_init(vsr, 64)
        k.stampv("start")
    k.I("s_and_b32", s(S_MT), "s2", 15)
    k.I("s_lshr_b32", s(S_NT), "s2", 4)
    vl = R.a(); vi = R.a(); vg = R.a(); t0 = R.a(); t1 = R.a(); t2 = R.a()
    k.I("v_and_b32", v(vl), 63, "v0")
    k.I("v_and_b32", v(vi), 15, "v0")
    k.I("v_lshrrev_b32", v(vg), 4, v(vl))
    k.I("v_lshrrev_b32", v(t0), 6, "v0")
    k.I("v_readfirstlane_b32", s(S_WAVE), v(t0))
    k.I("s_lshl_b32", s(S_T0), s(S_MT), 7)
    k.I("s_mov_b32", s(S_S0), s(S_T0))
    k.I("s_lshl_b32", s(S_T1), s(S_WAVE), 5)
    k.I("s_add_u32", s(S_T0), s(S_T0), s(S_T1))
    k.I("s_mul_i32", s(S_XK), s(S_T0), 1152)
    k.I("s_mul_i32", s(S_WKOFF), s(S_NT), 288)
    k.I("s_lshl_b32", s(S_M0X), s(S_WAVE), 11)
    k.I("s_lshl_b32", s(S_M0W), s(S_WAVE), 10)
    k.I("s_add_u32", s(S_M0W), s(S_M0W), XBUF)
    xd = R.a(2); vt["xd"] = xd
    k.I("v_lshrrev_b32", v(t0), 2, v(vl))
    k.I("s_mov_b32", s(S_T2), 1152)
    k.I("v_mul_lo_u32", v(t0), v(t0), s(S_T2))
    k.I("v_and_b32", v(t1), 3, v(vl))
    k.I("v_xor_b32", v(t1), v(t1), v(vg))
    k.I("v_lshl_add_u32", v(xd), v(t1), 4, v(t0))
    k.I("v_add_u32", v(xd + 1), 16 * 1152, v(xd))
    wd = R.a(3); vt["wd"] = wd
    k.I("s_mov_b32", s(S_T3), 3456)
    k.I("s_movk_i32", s(S_T2), 3641)
    for i in range(3):
        k.I("v_add_u32", v(t0), 256 * i, "v0")
        k.I("v_mul_lo_u32", v(t1), v(t0), s(S_T2))
        k.I("v_lshrrev_b32", v(t1), 16, v(t1))
        k.I("v_mul_u32_u24", v(t2), 18, v(t1))
        k.I("v_sub_u32", v(t2), v(t0), v(t2))
        k.I("v_mul_lo_u32", v(t1), v(t1), s(S_T3))
        k.I("v_lshl_add_u32", v(wd + i), v(t2), 4, v(t1))
    xa = R.a(2); vt["xa"] = xa
    k.I("v_lshlrev_b32", v(t0), 5, s(S_WAVE))
    k.I("v_add_u32", v(t0), v(t0), v(vi))
    k.I("v_lshlrev_b32", v(t0), 6, v(t0))
    k.I("v_and_b32", v(t1), 1, v(vg))
    k.I("v_lshl_add_u32", v(t0), v(t1), 3, v(t0))
    k.I("v_lshrrev_b32", v(t1), 2, v(vi))
    k.I("v_lshrrev_b32", v(t2), 1, v(vg))
    k.I("v_xor_b32", v(t1), v(t1), v(t2))
    k.I("v_lshl_add_u32", v(xa), v(t1), 4, v(t0))
    k.I("v_xor_b32", v(xa + 1), 32, v(xa))
    wa = R.a(); vt["wa"] = wa
    k.I("v_lshrrev_b32", v(t0), 2, v(vi))
    k.I("v_lshl_add_u32", v(t0), v(vg), 2, v(t0))
    k.I("v_mul_u32_u24", v(t0), 288, v(t0))
    k.I("v_and_b32", v(t1), 3, v(vi))
    k.I("v_lshl_add_u32", v(t0), v(t1), 3, v(t0))
    k.I("v_add_u32", v(wa), XBUF, v(t0))
    vt["acc"] = R.a(72, 4)
    vt["fx"] = R.a(8, 4)
    vt["fw"] = R.a(36, 4)
    acc = vt["acc"]
    tmp = vt["fw"]

    lab_v = k.newlabel("vpath")
    lab_end = k.newlabel("gend")
    k.I("s_cmp_ge_u32", s(S_NT), 8)
    k.I("s_cbranch_scc1", lab_v)
    k.stampv("pre main")
    gemm_mainloop(k, R, "NS", 18, 1152, 3456, vt)
    k.stampv("post main")
    k.I("s_barrier")
    k.I("s_cmp_lt_u32", s(S_NT), 4)
    k.I("s_cselect_b32", s(S_C0), f32bits(QSCALE), f32bits(1.0))
    k.I("s_cselect_b32", s(S_C1), 0, "0x3F803F80")
    rb = t0
    k.I("v_lshlrev_b32", v(rb), 5, s(S_WAVE))
    k.I("v_add_u32", v(rb), v(rb), v(vi))
    k.I("v_mul_u32_u24", v(rb), 400, v(rb))
    for t in range(9):
        for j in range(2):
            nreg = t1
            k.I("v_lshlrev_b32", v(nreg), 2, v(vg))
            k.I("v_add_u32", v(nreg), 16 * t + 2 * j, v(nreg))
            k.I("v_mul_u32_u24", v(t2), 57, v(nreg))
            k.I("v_lshrrev_b32", v(t2), 10, v(t2))
            k.I("v_mul_u32_u24", v(t2), 12, v(t2))
            k.I("v_lshl_add_u32", v(t2), v(nreg), 1, v(t2))
            k.I("v_add_u32", v(t2), v(t2), v(rb))
            for st in range(2):
                a = acc + (st * 9 + t) * 4 + 2 * j
                d = tmp + ((t * 2 + j) * 2 + st) % 32
                k.I("v_mul_f32", v(a), s(S_C0), v(a))
                k.I("v_mul_f32", v(a + 1), s(S_C0), v(a + 1))
                k.I("v_cvt_pk_bf16_f32", v(d), v(a), v(a + 1))
                k.I("ds_write_b32", v(t2), v(d), mods="offset:%d" % (st * 6400))
    k.I("v_and_b32", v(t1), 127, "v0")
    k.I("v_mul_u32_u24", v(t1), 400, v(t1))
    k.I("v_lshrrev_b32", v(t2), 7, "v0")
    k.I("v_mul_u32_u24", v(t2), 48, v(t2))
    k.I("v_add_u32", v(t1), v(t1), v(t2))
    k.I("v_mov_b32", v(tmp), s(S_C1))
    k.I("v_mov_b32", v(tmp + 1), 0)
    for i in range(4):
        k.I("ds_write_b32", v(t1), v(tmp), mods="offset:%d" % (36 + 96 * i))
        k.I("ds_write_b32", v(t1), v(tmp + 1), mods="offset:%d" % (40 + 96 * i))
        k.I("ds_write_b32", v(t1), v(tmp + 1), mods="offset:%d" % (44 + 96 * i))
    k.wait(lgkm=0)
    k.I("s_barrier")
    k.I("s_and_b32", s(S_H0), s(S_NT), 3)
    k.I("s_lshl_b32", s(S_H0), s(S_H0), 3)
    lab_k = k.newlabel("kpath")
    k.I("s_cmp_ge_u32", s(S_NT), 4)
    k.I("s_cbranch_scc1", lab_k)
    k.I("v_lshrrev_b32", v(t0), 2, "v0")
    k.I("v_and_b32", v(t1), 3, "v0")
    k.I("v_mul_u32_u24", v(t2), 400, v(t0))
    k.I("v_lshl_add_u32", v(t2), v(t1), 4, v(t2))
    k.I("v_lshlrev_b32", v(t0), 6, v(t0))
    k.I("v_lshl_add_u32", v(t0), v(t1), 4, v(t0))
    k.I("v_cmp_eq_u32", "vcc", 3, v(t1))
    k.I("s_lshl_b32", s(S_T0), s(S_H0), 11)
    k.I("s_add_u32", s(S_T0), s(S_T0), s(S_S0))
    k.I("s_lshl_b32", s(S_T0), s(S_T0), 6)
    k.I("s_add_u32", s(S_T0), s(S_T0), LY.QP_OFF)
    for it in range(16):
        hl, half = it >> 1, it & 1
        d = tmp + (it % 4) * 4
        k.I("ds_read_b128", vr(d, 4), v(t2), mods="offset:%d" % (half * 64 * 400 + hl * 48))
        for r in range(4):
            k.I("v_cndmask_b32", v(d + r), v(d + r), 0, "vcc") if False else k.I("v_cndmask_b32", v(d + r), v(d + r), "0", "vcc")
        k.I("s_add_u32", s(S_T1), s(S_T0), hl * 2048 * 64 + half * 64 * 64)
        k.I("buffer_store_dwordx4", vr(d, 4), v(t0), sr(S_WS, 4), s(S_T1), mods="offen")
    k.I("s_branch", lab_end)
    k.L(lab_k)
    k.I("s_lshr_b32", s(S_T0), s(S_S0), 8)
    k.I("s_lshl_b32", s(S_T1), s(S_H0), 3)
    k.I("s_add_u32", s(S_T0), s(S_T0), s(S_T1))
    k.I("s_mul_i32", s(S_T0), s(S_T0), LY.KVREC)
    k.I("s_and_b32", s(S_T1), s(S_S0), 255)
    k.I("s_mul_i32", s(S_T1), s(S_T1), 48)
    k.I("s_add_u32", s(S_T0), s(S_T0), s(S_T1))
    k.I("s_add_u32", s(S_T0), s(S_T0), LY.KV_OFF)
    la = [R.a() for _ in range(3)]
    ga = [R.a() for _ in range(3)]
    for j in range(3):
        k.I("v_add_u32", v(t0), 256 * j, "v0")
        k.I("v_cmp_le_u32", "vcc", 384, v(t0))
        k.I("v_cndmask_b32", v(t1), 0, 1, "vcc")
        k.I("v_mul_u32_u24", v(t2), 384, v(t1))
        k.I("v_sub_u32", v(t0), v(t0), v(t2))
        k.I("v_mul_u32_u24", v(t2), 171, v(t0))
        k.I("v_lshrrev_b32", v(t2), 9, v(t2))
        k.I("v_mul_u32_u24", v(la[j]), 400, v(t2))
        k.I("v_mul_u32_u24", v(t2), 3, v(t2))
        k.I("v_sub_u32", v(t2), v(t0), v(t2))
        k.I("v_lshl_add_u32", v(la[j]), v(t2), 4, v(la[j]))
        k.I("v_mul_u32_u24", v(t2), 48, v(t1))
        k.I("v_add_u32", v(la[j]), v(la[j]), v(t2))
        k.I("s_mov_b32", s(S_T1), 8 * LY.KVREC)
        k.I("v_mul_lo_u32", v(ga[j]), v(t1), s(S_T1))
        k.I("v_lshl_add_u32", v(ga[j]), v(t0), 4, v(ga[j]))
    for hp2 in range(4):
        for j in range(3):
            d = tmp + ((hp2 * 3 + j) % 4) * 4
            k.I("ds_read_b128", vr(d, 4), v(la[j]), mods="offset:%d" % (hp2 * 96))
            k.I("s_add_u32", s(S_T1), s(S_T0), hp2 * 2 * 8 * LY.KVREC)
            k.I("buffer_store_dwordx4", vr(d, 4), v(ga[j]), sr(S_WS, 4), s(S_T1), mods="offen")
    k.I("s_branch", lab_end)

    k.L(lab_v)
    gemm_mainloop(k, R, "SN", 18, 1152, 3456, vt)
    k.I("s_barrier")
    VP = 272
    k.I("v_and_b32", v(t0), 1, v(vg))
    k.I("v_lshlrev_b32", v(t0), 3, v(t0))
    k.I("v_and_b32", v(t1), 2, v(vg))
    k.I("v_lshl_add_u32", v(t0), v(t1), 1, v(t0))
    k.I("v_lshl_add_u32", v(t0), s(S_WAVE), 5, v(t0))
    k.I("v_lshlrev_b32", v(t0), 1, v(t0))
    k.I("v_mul_u32_u24", v(t1), VP, v(vi))
    k.I("v_add_u32", v(t0), v(t0), v(t1))
    for st in range(2):
        for t in range(9):
            a = acc + (st * 9 + t) * 4
            d = tmp + ((st * 9 + t) % 16) * 2
            k.I("v_cvt_pk_bf16_f32", v(d), v(a), v(a + 1))
            k.I("v_cvt_pk_bf16_f32", v(d + 1), v(a + 2), v(a + 3))
            k.I("ds_write_b64", v(t0), vr(d, 2), mods="offset:%d" % (t * 16 * VP + st * 32))
    k.wait(lgkm=0)
    k.I("s_barrier")
    k.I("s_and_b32", s(S_H0), s(S_NT), 3)
    k.I("s_lshl_b32", s(S_H0), s(S_H0), 3)
    k.I("s_lshr_b32", s(S_T0), s(S_S0), 8)
    k.I("s_lshl_b32", s(S_T1), s(S_H0), 3)
    k.I("s_add_u32", s(S_T0), s(S_T0), s(S_T1))
    k.I("s_mul_i32", s(S_T0), s(S_T0), LY.KVREC)
    k.I("s_and_b32", s(S_T1), s(S_S0), 255)
    k.I("s_lshl_b32", s(S_T1), s(S_T1), 1)
    k.I("s_add_u32", s(S_T0), s(S_T0), s(S_T1))
    k.I("s_add_u32", s(S_T0), s(S_T0), LY.KV_OFF + LY.KPART)
    k.I("v_lshrrev_b32", v(t0), 4, "v0")
    k.I("v_and_b32", v(t1), 15, "v0")
    k.I("v_lshlrev_b32", v(t1), 4, v(t1))
    k.I("s_mov_b32", s(S_T2), 8 * LY.KVREC)
    for it in range(9):
        d = tmp + (it % 4) * 4
        la_, ga_ = tmp + 16, tmp + 17
        k.I("v_add_u32", v(t2), 16 * it, v(t0))
        k.I("v_mul_u32_u24", v(la_), VP, v(t2))
        k.I("v_add_u32", v(la_), v(la_), v(t1))
        k.I("ds_read_b128", vr(d, 4), v(la_))
        k.I("v_mul_u32_u24", v(ga_), 57, v(t2))
        k.I("v_lshrrev_b32", v(ga_), 10, v(ga_))
        k.I("v_mul_u32_u24", v(la_), 18, v(ga_))
        k.I("v_sub_u32", v(t2), v(t2), v(la_))
        k.I("v_mul_lo_u32", v(ga_), v(ga_), s(S_T2))
        k.I("v_mul_u32_u24", v(t2), LY.VPITCH, v(t2))
        k.I("v_add_u32", v(ga_), v(ga_), v(t2))
        k.I("v_add_u32", v(ga_), v(ga_), v(t1))
        k.I("buffer_store_dwordx4", vr(d, 4), v(ga_), sr(S_WS, 4), s(S_T0), mods="offen")
    k.I("v_cmp_gt_u32", "vcc", 128, "v0")
    k.I("s_and_saveexec_b64", sr(S_SAVE, 2), "vcc")
    k.I("v_mul_lo_u32", v(t2), v(t0), s(S_T2))
    k.I("v_add_u32", v(t2), 18 * LY.VPITCH, v(t2))
    k.I("v_add_u32", v(t2), v(t2), v(t1))
    for r in range(4):
        k.I("v_mov_b32", v(tmp + r), "0x3F803F80")
    k.I("buffer_store_dwordx4", vr(tmp, 4), v(t2), sr(S_WS, 4), s(S_T0), mods="offen")
    k.I("s_mov_b64", "exec", sr(S_SAVE, 2))
    k.L(lab_end)
    k.wait(vm=0)
    if prof:
        k.stampv("end")
        lx = k.newlabel("nodump")
        k.I("s_cmp_lg_u32", "s2", 0)
        k.I("s_cbranch_scc1", lx)
        k.I("s_cmp_lg_u32", s(S_WAVE), 0)
        k.I("s_cbranch_scc1", lx)
        k.stampv_dump(t0)
        k.L(lx)
        k.sv_reg = None
    k.I("s_endpgm")


INV2PI = 0.15915494309189535


def bf16_round_f32(k, dst, src, tmp):
    k.I("v_cvt_pk_bf16_f32", v(tmp), v(src), v(src))
    k.I("v_lshlrev_b32", v(dst), 16, v(tmp))


def role_gate(k):
    R = RA(1)
    k.C("---- role: gate ----")
    vl = R.a(); t0 = R.a(); t1 = R.a(); t2 = R.a()
    gw = R.a(9); xv = R.a(9); accv = R.a(); res = R.a()
    k.I("v_and_b32", v(vl), 63, "v0")
    k.I("v_lshrrev_b32", v(t0), 6, "v0")
    k.I("v_readfirstlane_b32", s(S_WAVE), v(t0))
    k.I("v_lshlrev_b32", v(t0), 1, v(vl))
    for j in range(9):
        k.I("buffer_load_ushort", v(gw + j), v(t0), sr(S_W, 4), 0, mods="offen offset:%d" % (128 * j))
    k.I("s_sub_u32", s(S_T0), "s2", 1056)
    k.I("s_lshl_b32", s(S_T0), s(S_T0), 5)
    k.I("s_lshl_b32", s(S_T1), s(S_WAVE), 3)
    k.I("s_add_u32", s(S_T0), s(S_T0), s(S_T1))
    k.I("s_mul_i32", s(S_T2), s(S_T0), 1152)
    k.I("v_mov_b32", v(res), 0)
    for j in range(9):
        k.I("v_lshlrev_b32", v(gw + j), 16, v(gw + j))
    for r in range(8):
        for j in range(9):
            k.I("buffer_load_ushort", v(xv + j), v(t0), sr(S_X, 4), s(S_T2), mods="offen offset:%d" % (128 * j))
        k.I("s_add_u32", s(S_T2), s(S_T2), 1152)
        k.I("v_mov_b32", v(accv), 0)
        for j in range(9):
            k.I("v_lshlrev_b32", v(t1), 16, v(xv + j))
            k.I("v_mul_f32", v(t1), v(t1), v(gw + j))
            k.I("v_cvt_pk_bf16_f32", v(t1), v(t1), v(t1))
            k.I("v_lshlrev_b32", v(t1), 16, v(t1))
            k.I("v_add_f32", v(accv), v(accv), v(t1))
        k.I("v_add_f32", v(accv), v(accv), v(accv), mods="quad_perm:[1,0,3,2] row_mask:0xf bank_mask:0xf")
        k.I("v_add_f32", v(accv), v(accv), v(accv), mods="quad_perm:[2,3,0,1] row_mask:0xf bank_mask:0xf")
        k.I("v_add_f32", v(accv), v(accv), v(accv), mods="row_half_mirror row_mask:0xf bank_mask:0xf")
        k.I("v_add_f32", v(accv), v(accv), v(accv), mods="row_mirror row_mask:0xf bank_mask:0xf")
        k.I("v_readlane_b32", s(S_T1), v(accv), 0)
        k.I("v_readlane_b32", s(S_T3), v(accv), 16)
        k.I("v_readlane_b32", s(S_C0), v(accv), 32)
        k.I("v_readlane_b32", s(S_C1), v(accv), 48)
        k.I("v_mov_b32", v(t1), s(S_T1))
        k.I("v_add_f32", v(t1), s(S_T3), v(t1))
        k.I("v_add_f32", v(t1), s(S_C0), v(t1))
        k.I("v_add_f32", v(t1), s(S_C1), v(t1))
        k.I("v_cmp_eq_u32", "vcc", r, v(vl))
        k.I("v_cndmask_b32", v(res), v(res), v(t1), "vcc")
    bf16_round_f32(k, res, res, t1)
    k.I("v_mul_f32", v(t1), f32bits(-LOG2E), v(res))
    k.I("v_exp_f32", v(t1), v(t1))
    k.I("v_add_f32", v(t1), 1.0, v(t1))
    k.I("v_rcp_f32", v(t1), v(t1))
    bf16_round_f32(k, t1, t1, t2)
    k.I("v_cmp_gt_u32", "vcc", 8, v(vl))
    k.I("s_and_saveexec_b64", sr(S_SAVE, 2), "vcc")
    k.I("s_lshl_b32", s(S_T0), s(S_T0), 2)
    k.I("s_add_u32", s(S_T0), s(S_T0), LY.G_OFF)
    k.I("v_lshlrev_b32", v(t2), 2, v(vl))
    k.I("buffer_store_dword", v(t1), v(t2), sr(S_WS, 4), s(S_T0), mods="offen")
    k.I("s_mov_b64", "exec", sr(S_SAVE, 2))
    k.I("s_endpgm")


def role_xt(k):
    R = RA(1)
    k.C("---- role: x transpose ----")
    P = 144
    vl = R.a(); vi = R.a(); vg = R.a(); t0 = R.a(); t1 = R.a(); t2 = R.a()
    d0 = R.a(8, 4)
    k.I("v_and_b32", v(vl), 63, "v0")
    k.I("v_and_b32", v(vi), 15, "v0")
    k.I("v_lshrrev_b32", v(vg), 4, v(vl))
    k.I("v_lshrrev_b32", v(t0), 6, "v0")
    k.I("v_readfirstlane_b32", s(S_WAVE), v(t0))
    k.I("s_sub_u32", s(S_T0), "s2", 768)
    k.I("s_and_b32", s(S_MT), s(S_T0), 31)
    k.I("s_lshr_b32", s(S_NT), s(S_T0), 5)
    k.I("v_lshrrev_b32", v(t0), 3, "v0")
    k.I("v_and_b32", v(t1), 7, "v0")
    k.I("v_mul_u32_u24", v(t2), 1152, v(t0))
    k.I("v_lshl_add_u32", v(t2), v(t1), 4, v(t2))
    k.I("s_mul_i32", s(S_T1), s(S_MT), 64 * 1152)
    k.I("s_lshl_b32", s(S_T2), s(S_NT), 7)
    k.I("s_add_u32", s(S_T1), s(S_T1), s(S_T2))
    k.I("s_add_u32", s(S_T2), s(S_T1), 32 * 1152)
    k.I("buffer_load_dwordx4", vr(d0, 4), v(t2), sr(S_X, 4), s(S_T1), mods="offen")
    k.I("buffer_load_dwordx4", vr(d0 + 4, 4), v(t2), sr(S_X, 4), s(S_T2), mods="offen")
    k.I("v_mul_u32_u24", v(t0), P, v(t0))
    k.I("v_lshl_add_u32", v(t0), v(t1), 4, v(t0))
    k.I("ds_write_b128", v(t0), vr(d0, 4))
    k.I("ds_write_b128", v(t0), vr(d0 + 4, 4), mods="offset:%d" % (32 * P))
    k.wait(lgkm=0)
    k.I("s_barrier")
    k.I("v_lshrrev_b32", v(t0), 2, v(vi))
    k.I("v_lshl_add_u32", v(t0), v(vg), 3, v(t0))
    k.I("v_mul_u32_u24", v(t0), P, v(t0))
    k.I("v_and_b32", v(t1), 3, v(vi))
    k.I("v_lshl_add_u32", v(t0), v(t1), 3, v(t0))
    k.I("s_lshl_b32", s(S_T1), s(S_WAVE), 5)
    k.I("v_add_u32", v(t0), s(S_T1), v(t0))
    for half in range(2):
        for q in range(2):
            k.I("ds_read_b64_tr_b16", vr(d0 + half * 4 + q * 2, 2), v(t0), mods="offset:%d" % ((32 * half + 4 * q) * P))
    k.I("v_lshlrev_b32", v(t1), 12, v(vi))
    k.I("v_lshl_add_u32", v(t1), v(vg), 4, v(t1))
    k.I("s_lshl_b32", s(S_T1), s(S_NT), 6)
    k.I("s_lshl_b32", s(S_T2), s(S_WAVE), 4)
    k.I("s_add_u32", s(S_T1), s(S_T1), s(S_T2))
    k.I("s_lshl_b32", s(S_T1), s(S_T1), 12)
    k.I("s_lshl_b32", s(S_T2), s(S_MT), 7)
    k.I("s_add_u32", s(S_T1), s(S_T1), s(S_T2))
    k.I("s_add_u32", s(S_T1), s(S_T1), LY.XT_OFF)
    k.I("buffer_store_dwordx4", vr(d0, 4), v(t1), sr(S_WS, 4), s(S_T1), mods="offen")
    k.I("buffer_store_dwordx4", vr(d0 + 4, 4), v(t1), sr(S_WS, 4), s(S_T1), mods="offen offset:64")
    k.I("s_endpgm")


def role_kgen(k):
    R = RA(1)
    k.C("---- role: S4D kernel table generation ----")
    vl = R.a(); vi = R.a(); vg = R.a()
    t = [R.a() for _ in range(12)]
    prm = R.a(4, 4)
    pc = R.a(); pf = R.a()
    acc = R.a(4, 4)
    Ah = R.a(4, 4); Al = R.a(4, 4); Bh = R.a(4, 4); Bl = R.a(4, 4)
    k.I("v_and_b32", v(vl), 63, "v0")
    k.I("v_and_b32", v(vi), 15, "v0")
    k.I("v_lshrrev_b32", v(vg), 4, v(vl))
    k.I("v_lshrrev_b32", v(t[0]), 6, "v0")
    k.I("v_readfirstlane_b32", s(S_WAVE), v(t[0]))
    k.I("s_sub_u32", s(S_MT), "s2", 192)
    k.I("v_and_b32", v(t[0]), 127, "v0")
    k.I("v_lshlrev_b32", v(t[0]), 1, v(t[0]))
    k.I("s_lshl_b32", s(S_T0), s(S_MT), 8)
    for j, srd in enumerate((44, 48, 52, 56)):
        k.I("buffer_load_ushort", v(t[1 + j]), v(t[0]), sr(srd, 4), s(S_T0), mods="offen")
    k.I("s_lshl_b32", s(S_T1), s(S_MT), 1)
    k.I("v_mov_b32", v(t[5]), 0)
    k.I("buffer_load_ushort", v(t[5]), v(t[5]), sr(60, 4), s(S_T1), mods="offen")
    for j in range(1, 6):
        k.I("v_lshlrev_b32", v(t[j]), 16, v(t[j]))
    k.I("v_mul_f32", v(t[5]), f32bits(LOG2E), v(t[5]))
    k.I("v_exp_f32", v(t[5]), v(t[5]))
    bf16_round_f32(k, t[5], t[5], t[6])
    k.I("v_mul_f32", v(t[1]), f32bits(LOG2E), v(t[1]))
    k.I("v_exp_f32", v(t[1]), v(t[1]))
    bf16_round_f32(k, t[1], t[1], t[6])
    k.I("v_mul_f32", v(prm), v(t[1]), v(t[5]))
    k.I("v_mul_f32", v(prm), f32bits(-LOG2E), v(prm))
    k.I("v_mul_f32", v(prm + 1), v(t[2]), v(t[5]))
    k.I("v_mul_f32", v(prm + 1), f32bits(INV2PI), v(prm + 1))
    k.I("v_mul_f32", v(prm + 2), v(t[3]), v(t[5]))
    k.I("v_add_f32", v(prm + 2), v(prm + 2), v(prm + 2))
    k.I("v_mul_f32", v(prm + 3), v(t[4]), v(t[5]))
    k.I("v_add_f32", v(prm + 3), v(prm + 3), v(prm + 3))
    k.I("v_lshlrev_b32", v(t[0]), 3, v(t[0]))
    k.I("ds_write_b128", v(t[0]), vr(prm, 4))
    k.wait(lgkm=0)
    k.I("s_barrier")
    pcs = [pc, R.a(), R.a()]
    k.I("v_lshlrev_b32", v(pf), 3, v(vi))
    k.I("v_lshrrev_b32", v(t[0]), 3, v(vi))
    k.I("v_lshlrev_b32", v(t[0]), 7, v(t[0]))
    k.I("v_and_b32", v(t[1]), 7, v(vi))
    k.I("v_add_u32", v(pcs[0]), v(t[0]), v(t[1]))
    k.I("v_lshrrev_b32", v(t[0]), 2, v(vi))
    k.I("v_lshlrev_b32", v(t[0]), 7, v(t[0]))
    k.I("v_and_b32", v(t[1]), 3, v(vi))
    k.I("v_lshl_add_u32", v(t[0]), v(t[1]), 1, v(t[0]))
    k.I("v_add_u32", v(t[0]), 256, v(t[0]))
    k.I("v_lshrrev_b32", v(t[1]), 1, v(vi))
    k.I("v_lshlrev_b32", v(t[1]), 7, v(t[1]))
    k.I("v_and_b32", v(t[2]), 1, v(vi))
    k.I("v_lshl_add_u32", v(t[1]), v(t[2]), 2, v(t[1]))
    k.I("v_cmp_gt_u32", "vcc", 8, v(vi))
    k.I("v_cndmask_b32", v(pcs[1]), v(t[1]), v(t[0]), "vcc")
    k.I("v_lshlrev_b32", v(pcs[2]), 7, v(vi))
    k.I("v_add_u32", v(pcs[2]), 1024, v(pcs[2]))
    for r in [pf] + pcs:
        k.I("v_cvt_f32_u32", v(r), v(r))
    accs = [acc, R.a(4, 4), R.a(4, 4)]
    for a_ in accs:
        for r in range(4):
            k.I("v_mov_b32", v(a_ + r), 0)
    pa = R.a()
    k.I("v_lshlrev_b32", v(pa), 6, v(vg))
    k.I("s_lshl_b32", s(S_T0), s(S_WAVE), 9)
    k.I("v_add_u32", v(pa), s(S_T0), v(pa))
    P = [R.a(4, 4) for _ in range(4)]

    def cexp(pos, pr, er, ei, tm):
        k.I("v_mul_f32", v(er), v(pr), v(pos))
        k.I("v_exp_f32", v(er), v(er))
        k.I("v_mul_f32", v(tm), v(pr + 1), v(pos))
        k.I("v_fract_f32", v(tm), v(tm))
        k.I("v_sin_f32", v(ei), v(tm))
        k.I("v_cos_f32", v(tm), v(tm))
        k.I("v_mul_f32", v(ei), v(er), v(ei))
        k.I("v_mul_f32", v(er), v(er), v(tm))

    def split(hi, lo, a, b, ta, tb):
        k.I("v_cvt_pk_bf16_f32", v(hi), v(a), v(b))
        k.I("v_lshlrev_b32", v(ta), 16, v(hi))
        k.I("v_and_b32", v(tb), "0xffff0000", v(hi))
        k.I("v_sub_f32", v(ta), v(a), v(ta))
        k.I("v_sub_f32", v(tb), v(b), v(tb))
        k.I("v_cvt_pk_bf16_f32", v(lo), v(ta), v(tb))

    for m in range(2):
        for q in range(4):
            k.I("ds_read_b128", vr(P[q], 4), v(pa), mods="offset:%d" % ((16 * m + q) * 16))
        for q in range(4):
            fr, fi = t[7], t[8]
            cexp(pf, P[q], fr, fi, t[9])
            split(Bh + q, Bl + q, fr, fi, t[10], t[11])
        for tl in range(3):
            for q in range(4):
                pr = P[q]
                er, ei, tm, gr, gi = t[0], t[1], t[2], t[3], t[4]
                cexp(pcs[tl], pr, er, ei, tm)
                k.I("v_mul_f32", v(gr), v(pr + 2), v(er))
                k.I("v_fma_f32", v(gr), "-" + v(pr + 3), v(ei), v(gr))
                k.I("v_mul_f32", v(gi), v(pr + 2), v(ei))
                k.I("v_fma_f32", v(gi), v(pr + 3), v(er), v(gi))
                k.I("v_sub_f32", v(gi), 0, v(gi))
                split(Ah + q, Al + q, gr, gi, t[5], t[6])
            a_ = accs[tl]
            k.I("v_mfma_f32_16x16x32_bf16", vr(a_, 4), vr(Ah, 4), vr(Bh, 4), vr(a_, 4))
            k.I("v_mfma_f32_16x16x32_bf16", vr(a_, 4), vr(Ah, 4), vr(Bl, 4), vr(a_, 4))
            k.I("v_mfma_f32_16x16x32_bf16", vr(a_, 4), vr(Al, 4), vr(Bh, 4), vr(a_, 4))
    TB = 2048
    PBK = 8192
    k.I("v_lshlrev_b32", v(t[0]), 4, v(vl))
    k.I("s_mul_i32", s(S_T0), s(S_WAVE), 3072)
    k.I("v_add_u32", v(t[1]), s(S_T0), v(t[0]))
    for tl in range(3):
        k.I("ds_write_b128", v(t[1]), vr(accs[tl], 4), mods="offset:%d" % (PBK + 1024 * tl))
    k.wait(lgkm=0)
    k.I("s_barrier")
    lab_t3 = k.newlabel("kg_t3")
    k.I("s_cmp_ge_u32", s(S_WAVE), 3)
    k.I("s_cbranch_scc1", lab_t3)
    k.I("s_lshl_b32", s(S_T0), s(S_WAVE), 10)
    k.I("v_add_u32", v(t[1]), s(S_T0), v(t[0]))
    for w_ in range(4):
        k.I("ds_read_b128", vr(P[w_], 4), v(t[1]), mods="offset:%d" % (PBK + 3072 * w_))
    for r in range(4):
        k.I("v_add_f32", v(P[0] + r), v(P[0] + r), v(P[1] + r))
        k.I("v_add_f32", v(P[2] + r), v(P[2] + r), v(P[3] + r))
        k.I("v_add_f32", v(P[0] + r), v(P[0] + r), v(P[2] + r))
    ib = t[2]
    lab_t1 = k.newlabel("kg_t1"); lab_t2 = k.newlabel("kg_t2"); lab_tw = k.newlabel("kg_tw")
    inc = [t[3], t[4], t[5]]
    k.I("s_cmp_eq_u32", s(S_WAVE), 1)
    k.I("s_cbranch_scc1", lab_t1)
    k.I("s_cmp_eq_u32", s(S_WAVE), 2)
    k.I("s_cbranch_scc1", lab_t2)
    k.I("v_lshrrev_b32", v(ib), 1, v(vg))
    k.I("v_lshlrev_b32", v(ib), 7, v(ib))
    k.I("v_and_b32", v(t[6]), 1, v(vg))
    k.I("v_lshl_add_u32", v(ib), v(t[6]), 2, v(ib))
    k.I("v_lshl_add_u32", v(ib), v(vi), 3, v(ib))
    for r in range(3):
        k.I("v_mov_b32", v(inc[r]), 4 * (r + 1))
    k.I("s_branch", lab_tw)
    k.L(lab_t1)
    k.I("v_lshlrev_b32", v(ib), 6, v(vg))
    k.I("v_add_u32", v(ib), 256, v(ib))
    k.I("v_cmp_gt_u32", "vcc", 2, v(vg))
    k.I("v_cndmask_b32", v(t[6]), 1, 2, "vcc")
    k.I("v_lshlrev_b32", v(t[6]), v(t[6]), v(vi))
    k.I("v_add_u32", v(ib), v(ib), v(t[6]))
    k.I("v_mov_b32", v(inc[0]), 4)
    k.I("v_mov_b32", v(inc[1]), 128)
    k.I("v_cndmask_b32", v(inc[1]), v(inc[1]), 8, "vcc")
    k.I("v_mov_b32", v(t[6]), 132)
    k.I("v_cndmask_b32", v(inc[2]), v(t[6]), 12, "vcc")
    k.I("s_branch", lab_tw)
    k.L(lab_t2)
    k.I("v_lshlrev_b32", v(ib), 6, v(vg))
    k.I("v_add_u32", v(ib), 512, v(ib))
    k.I("v_add_u32", v(ib), v(ib), v(vi))
    for r in range(3):
        k.I("v_mov_b32", v(inc[r]), 64 * (r + 1))
    k.L(lab_tw)
    k.I("v_lshlrev_b32", v(ib), 2, v(ib))
    k.I("ds_write_b32", v(ib), v(P[0]), mods="offset:%d" % TB)
    for r in range(3):
        k.I("v_add_u32", v(inc[r]), v(inc[r]), v(ib))
        k.I("ds_write_b32", v(inc[r]), v(P[0] + r + 1), mods="offset:%d" % TB)
    k.L(lab_t3)
    k.wait(lgkm=0)
    k.I("s_barrier")
    w = R.a(9)
    E = R.a(4, 4); OD = R.a(4, 4)
    k.I("v_lshlrev_b32", v(t[0]), 3, "v0")
    k.I("v_sub_u32", v(t[0]), 2047, v(t[0]))
    for j in range(9):
        k.I("v_subrev_u32", v(t[1]), j, v(t[0]))
        if j == 8:
            k.I("v_max_i32", v(t[1]), 0, v(t[1]))
        k.I("v_cvt_f32_u32", v(t[3]), v(t[1]))
        k.I("v_cvt_pk_bf16_f32", v(t[3]), v(t[3]), v(t[3]))
        k.I("v_and_b32", v(t[3]), "0xffff", v(t[3]))
        k.I("v_subrev_u32", v(t[3]), 17024, v(t[3]))
        k.I("v_cmp_gt_u32", "vcc", 256, v(t[1]))
        k.I("v_cndmask_b32", v(t[3]), v(t[3]), v(t[1]), "vcc")
        k.I("v_lshlrev_b32", v(t[3]), 2, v(t[3]))
        k.I("ds_read_b32", v(w + j), v(t[3]), mods="offset:%d" % TB)
    k.I("v_cmp_gt_u32", "vcc", 8, v(t[0]))
    k.I("v_cndmask_b32", v(w + 8), v(w + 8), 0, "vcc")
    for i in range(4):
        k.I("v_cvt_pk_bf16_f32", v(E + i), v(w + 2 * i), v(w + 2 * i + 1))
        k.I("v_cvt_pk_bf16_f32", v(OD + i), v(w + 2 * i + 1), v(w + 2 * i + 2))
    k.I("s_mul_i32", s(S_T0), s(S_MT), LY.KRP)
    k.I("s_add_u32", s(S_T0), s(S_T0), LY.KR_OFF)
    k.I("v_lshlrev_b32", v(t[1]), 4, "v0")
    k.I("buffer_store_dwordx4", vr(E, 4), v(t[1]), sr(S_WS, 4), s(S_T0), mods="offen")
    k.I("s_add_u32", s(S_T1), s(S_T0), LY.KRV)
    k.I("buffer_store_dwordx4", vr(OD, 4), v(t[1]), sr(S_WS, 4), s(S_T1), mods="offen")
    for r in range(4):
        k.I("v_mov_b32", v(Ah + r), 0)
    k.I("v_mul_u32_u24", v(t[1]), LY.KRV, "v0")
    k.I("v_cmp_gt_u32", "vcc", 2, "v0")
    k.I("s_and_saveexec_b64", sr(S_SAVE, 2), "vcc")
    k.I("s_add_u32", s(S_T1), s(S_T0), 4096)
    k.I("buffer_store_dwordx4", vr(Ah, 4), v(t[1]), sr(S_WS, 4), s(S_T1), mods="offen")
    k.I("s_mov_b64", "exec", sr(S_SAVE, 2))
    k.I("s_endpgm")


def build_k1():
    k = Kernel("k1_kernel")
    prologue_ptrs(k, [(4, 0), (6, 8), (8, 104)])
    lab_kgen = k.newlabel("kgen")
    lab_xt = k.newlabel("xt")
    lab_gate = k.newlabel("gate")
    lab_exit = k.newlabel("exit")
    k.wait(lgkm=0)
    make_srd(k, S_X, 4, LY.S * LY.D * 2)
    make_srd(k, S_WS, 8, LY.WS_USED)
    k.I("s_cmp_ge_u32", "s2", 1120)
    k.I("s_cbranch_scc1", lab_exit)
    k.I("s_cmp_ge_u32", "s2", 1056)
    k.I("s_cbranch_scc1", lab_gate)
    k.I("s_cmp_ge_u32", "s2", 768)
    k.I("s_cbranch_scc1", lab_xt)
    k.I("s_cmp_ge_u32", "s2", 192)
    k.I("s_cbranch_scc1", lab_kgen)
    make_srd(k, S_W, 6, 576 * 1728 * 2)
    import os
    if os.environ.get("K1SKIP") == "gemm":
        k.I("s_endpgm")
    role_gemm1(k)
    k.L(lab_kgen)
    prologue_ptrs(k, [(44, 32), (48, 40), (52, 48), (56, 56), (60, 64)])
    k.wait(lgkm=0)
    for sd in (44, 48, 52, 56):
        k.I("s_mov_b32", s(sd + 2), 576 * 128 * 2)
        k.I("s_mov_b32", s(sd + 3), "0x00020000")
    k.I("s_mov_b32", s(62), 576 * 2)
    k.I("s_mov_b32", s(63), "0x00020000")
    role_kgen(k)
    k.L(lab_xt)
    role_xt(k)
    k.L(lab_gate)
    prologue_ptrs(k, [(4, 80)])
    k.wait(lgkm=0)
    make_srd(k, S_W, 4, 576 * 2)
    role_gate(k)
    k.L(lab_exit)
    k.I("s_endpgm")
    return k, dict(grid=1120, block=256, lds=LDS_K1)
```

```python
from asmlib import *
import layout as LY
from k1 import RA, f32bits, make_srd, prologue_ptrs

S_WS = 12
S_WAVE = 16
S_HEAD = 17
S_QT = 18
S_T0, S_T1, S_T2, S_T3 = 19, 20, 21, 22
S_BUF = 23
S_KVOFF = 24
S_CNT = 25
S_DELTA = 26
S_SAVE = 28
S_SAVE2 = 30

THR = 8.0
KVB = LY.KVREC


import os
EXPF = os.environ.get("EXPF", "")


def role_attn(k, prof=False):
    R = RA(1, 128)
    _I = k.I
    NB = [False]

    def kI(op, *a, **kw):
        if "noexp" in EXPF and op == "v_exp_f32":
            return None
        if "nocvt" in EXPF and op == "v_cvt_pk_bf16_f32":
            return None
        if "nomax" in EXPF and op in ("v_max3_f32",):
            return None
        if "nomfma" in EXPF and op.startswith("v_mfma"):
            return None
        if "nobr" in EXPF and op == "s_cbranch_vccnz":
            return None
        if "nolds" in EXPF and op.startswith("ds_read"):
            return None
        if "nobar" in EXPF and op == "s_barrier" and NB[0]:
            return None
        if "nodma" in EXPF and op == "buffer_load_dwordx4" and NB[0]:
            return None
        return _I(op, *a, **kw)
    k.I = kI
    k.C("---- role: attention ----")
    vl = R.a(); vq = R.a(); vh = R.a()
    t0 = R.a(); t1 = R.a(); t2 = R.a(); t3 = R.a()
    vdma = R.a(); ka = R.a(); va = R.a(); mneg = R.a()
    Q = R.a(8, 4)
    S2 = [R.a(16, 4), R.a(16, 4)]
    O = R.a(16, 4)
    KF = [R.a(8, 4), R.a(8, 4)]
    VF = [R.a(8, 4), R.a(8, 4)]
    P = R.a(8, 4)
    mx = R.a(8)
    if prof:
        vsr = R.a()
        k.stampv_init(vsr, 64)
        k.stampv("start")
    k.I("v_and_b32", v(vl), 63, "v0")
    k.I("v_and_b32", v(vq), 31, "v0")
    k.I("v_bfe_u32", v(vh), "v0", 5, 1)
    k.I("v_lshrrev_b32", v(t0), 6, "v0")
    k.I("v_readfirstlane_b32", s(S_WAVE), v(t0))
    k.I("s_and_b32", s(S_T0), "s2", 7)
    k.I("s_lshl_b32", s(S_T0), s(S_T0), 2)
    k.I("s_lshr_b32", s(S_T1), "s2", 3)
    k.I("s_and_b32", s(S_T1), s(S_T1), 3)
    k.I("s_add_u32", s(S_HEAD), s(S_T0), s(S_T1))
    k.I("s_lshr_b32", s(S_QT), "s2", 5)
    k.I("v_lshlrev_b32", v(vdma), 4, v(vl))
    k.I("s_lshl_b32", s(S_T0), s(S_WAVE), 10)
    k.I("v_add_u32", v(vdma), s(S_T0), v(vdma))
    k.I("s_mul_i32", s(S_KVOFF), s(S_HEAD), 8 * LY.KVREC)
    k.I("s_add_u32", s(S_KVOFF), s(S_KVOFF), LY.KV_OFF)
    k.I("s_mov_b32", s(S_BUF), s(S_T0))
    S_W1K = S_SAVE2
    k.I("s_mov_b32", s(S_W1K), s(S_T0))

    def issue_dma():
        for i in range(2):
            k.I("s_add_u32", "m0", s(S_BUF), i * 8192)
            k.I("s_add_u32", s(S_T1), s(S_KVOFF), i * 8192)
            k.I("buffer_load_dwordx4", v(vdma), sr(S_WS, 4), s(S_T1), mods="offen lds")
        lab = k.newlabel("skipd")
        k.I("s_cmp_ge_u32", s(S_WAVE), 6)
        k.I("s_cbranch_scc1", lab)
        k.I("s_add_u32", "m0", s(S_BUF), 2 * 8192)
        k.I("s_add_u32", s(S_T1), s(S_KVOFF), 2 * 8192)
        k.I("buffer_load_dwordx4", v(vdma), sr(S_WS, 4), s(S_T1), mods="offen lds")
        k.L(lab)
        k.I("s_add_u32", s(S_KVOFF), s(S_KVOFF), LY.KVREC)
        k.I("s_add_u32", s(S_BUF), s(S_BUF), KVB)
        k.I("s_add_u32", s(S_T1), s(S_W1K), 3 * KVB)
        k.I("s_cmp_ge_u32", s(S_BUF), s(S_T1))
        k.I("s_cselect_b32", s(S_BUF), s(S_W1K), s(S_BUF))

    S_KV0 = S_SAVE2 + 1
    k.I("s_mov_b32", s(S_KV0), s(S_KVOFF))
    issue_dma()
    issue_dma()
    k.I("s_lshl_b32", s(S_T0), s(S_HEAD), 11)
    k.I("s_lshl_b32", s(S_T1), s(S_QT), 8)
    k.I("s_add_u32", s(S_T0), s(S_T0), s(S_T1))
    k.I("s_lshl_b32", s(S_T1), s(S_WAVE), 5)
    k.I("s_add_u32", s(S_T0), s(S_T0), s(S_T1))
    k.I("s_lshl_b32", s(S_T0), s(S_T0), 6)
    k.I("s_add_u32", s(S_T0), s(S_T0), LY.QP_OFF)
    k.I("v_lshlrev_b32", v(t0), 6, v(vq))
    k.I("v_lshl_add_u32", v(t0), v(vh), 4, v(t0))
    k.I("buffer_load_dwordx4", vr(Q, 4), v(t0), sr(S_WS, 4), s(S_T0), mods="offen")
    k.I("buffer_load_dwordx4", vr(Q + 4, 4), v(t0), sr(S_WS, 4), s(S_T0), mods="offen offset:32")

    def lds_addrs():
        k.I("v_mul_u32_u24", v(ka), 48, v(vq))
        k.I("v_lshl_add_u32", v(ka), v(vh), 4, v(ka))
        k.I("v_mul_u32_u24", v(va), LY.VPITCH, v(vq))
        k.I("v_lshl_add_u32", v(va), v(vh), 4, v(va))
        k.I("v_add_u32", v(va), LY.KPART, v(va))
    lds_addrs()
    for i in range(16):
        k.I("v_mov_b32", v(O + i), 0)
    k.wait(vm=0)
    k.I("s_barrier")

    def read_kf(dst, blk):
        k.I("ds_read_b128", vr(dst, 4), v(ka), mods="offset:%d" % (blk * 1536))
        k.I("ds_read_b128", vr(dst + 4, 4), v(ka), mods="offset:%d" % (blk * 1536 + 32))

    def read_vf(dst, blk):
        k.I("ds_read_b128", vr(dst, 4), v(va), mods="offset:%d" % (blk * 64))
        k.I("ds_read_b128", vr(dst + 4, 4), v(va), mods="offset:%d" % (blk * 64 + 32))

    def qk1(S, kf):
        k.I("v_mfma_f32_32x32x16_bf16", vr(S, 16), vr(kf, 4), vr(Q, 4), 0)

    def qk2(S, kf):
        k.I("v_mfma_f32_32x32x16_bf16", vr(S, 16), vr(kf + 4, 4), vr(Q + 4, 4), vr(S, 16))

    def maxtree(S):
        k.I("v_max3_f32", v(mx), v(S), v(S + 1), v(S + 2))
        k.I("v_max3_f32", v(mx + 1), v(S + 3), v(S + 4), v(S + 5))
        k.I("v_max3_f32", v(mx + 2), v(S + 6), v(S + 7), v(S + 8))
        k.I("v_max3_f32", v(mx + 3), v(S + 9), v(S + 10), v(S + 11))
        k.I("v_max3_f32", v(mx + 4), v(S + 12), v(S + 13), v(S + 14))
        k.I("v_max3_f32", v(mx), v(mx), v(mx + 1), v(S + 15))
        k.I("v_max3_f32", v(mx + 2), v(mx + 2), v(mx + 3), v(mx + 4))
        k.I("v_max_f32", v(mx), v(mx), v(mx + 2))

    def both_halves_max():
        k.I("v_mov_b32", v(mx + 1), v(mx))
        k.I("v_permlane32_swap_b32", v(mx), v(mx + 1))
        k.I("v_max_f32", v(mx), v(mx), v(mx + 1))

    def set_m(xr):
        k.I("v_cvt_pk_bf16_f32", v(t2), v(xr), v(xr))
        k.I("v_lshlrev_b32", v(t3), 16, v(t2))
        k.I("v_sub_f32", v(xr), v(xr), v(t3))
        k.I("v_cvt_pk_bf16_f32", v(t2), v(t3), v(xr))
        k.I("v_and_b32", v(xr), "0xffff0000", v(t2))
        k.I("v_add_f32", v(xr), v(xr), v(t3))
        k.I("v_cmp_eq_u32", "vcc", 0, v(vh))
        k.I("v_cndmask_b32", v(Q + 5), v(Q + 5), v(t2), "vcc")

    def attn_pass(safe):
        slow = []
        read_kf(KF[0], 0)
        read_kf(KF[1], 1)
        read_vf(VF[0], 0)
        if safe:
            k.I("v_cmp_eq_u32", "vcc", 0, v(vh))
            k.I("v_mov_b32", v(t2), 0)
            k.I("v_cndmask_b32", v(Q + 5), v(Q + 5), v(t2), "vcc")
        qk1(S2[0], KF[0]); qk2(S2[0], KF[0])
        maxtree(S2[0])
        both_halves_max()
        k.I("v_sub_f32", v(mneg), 0, v(mx))
        set_m(mneg)
        qk1(S2[0], KF[0]); qk2(S2[0], KF[0])
        k.I("s_mov_b32", s(S_CNT), 0)
        k.I("s_mov_b32", s(S_DELTA), 0)
        lab_loop = k.newlabel("loop")
        k.L(lab_loop)
        NB[0] = True
        k.stampv("loop top")
        for blk in range(8):
            cur = blk & 1
            S, Sn = S2[cur], S2[cur ^ 1]
            if safe:
                maxtree(S)
                k.I("v_cmp_lt_f32", "vcc", f32bits(THR), v(mx))
                ls, lb = k.newlabel("slow"), k.newlabel("back")
                slow.append((ls, lb, S))
                k.I("s_cbranch_vccnz", ls)
                k.L(lb)
            qk1(Sn, KF[cur ^ 1])
            for i in range(4):
                k.I("v_exp_f32", v(S + i), v(S + i))
            qk2(Sn, KF[cur ^ 1])
            if blk == 6:
                k.wait(vm=0)
                k.I("s_barrier")
                lskip = k.newlabel("nodma")
                k.I("s_cmp_ge_u32", s(S_CNT), 6)
                k.I("s_cbranch_scc1", lskip)
                issue_dma()
                k.L(lskip)
                k.I("s_add_u32", s(S_DELTA), s(S_DELTA), 1)
                k.I("s_cmp_ge_u32", s(S_DELTA), 3)
                k.I("s_cselect_b32", s(S_DELTA), 0, s(S_DELTA))
                k.I("s_mov_b32", s(S_T0), KVB)
                k.I("s_cselect_b32", s(S_T0), -2 * KVB, s(S_T0))
                k.I("v_add_u32", v(ka), s(S_T0), v(ka))
            if blk == 7:
                k.I("v_add_u32", v(va), s(S_T0), v(va))
            read_kf(KF[cur], (blk + 2) & 7)
            read_vf(VF[cur ^ 1], (blk + 1) & 7)
            for i in range(4, 8):
                k.I("v_exp_f32", v(S + i), v(S + i))
            for i in range(4):
                k.I("v_cvt_pk_bf16_f32", v(P + i), v(S + 2 * i), v(S + 2 * i + 1))
            for i in range(8, 12):
                k.I("v_exp_f32", v(S + i), v(S + i))
            k.I("v_mfma_f32_32x32x16_bf16", vr(O, 16), vr(VF[cur], 4), vr(P, 4), vr(O, 16))
            for i in range(12, 16):
                k.I("v_exp_f32", v(S + i), v(S + i))
            for i in range(4, 8):
                k.I("v_cvt_pk_bf16_f32", v(P + i), v(S + 2 * i), v(S + 2 * i + 1))
            k.I("v_mfma_f32_32x32x16_bf16", vr(O, 16), vr(VF[cur] + 4, 4), vr(P + 4, 4), vr(O, 16))
            if blk in (0, 1):
                k.stampv("blk %d" % blk)
        k.I("s_add_u32", s(S_CNT), s(S_CNT), 1)
        k.I("s_cmp_lt_u32", s(S_CNT), int(os.environ.get("NCHK", "8")))
        k.I("s_cbranch_scc1", lab_loop)
        NB[0] = False
        return slow

    lab_done = k.newlabel("done")
    attn_pass(False)
    FLG = 3 * KVB
    k.I("s_mov_b32", s(S_T0), f32bits(2.0 ** 60))
    k.I("v_cmp_nlt_f32", "vcc", v(O + 10), s(S_T0))
    k.I("s_cmp_lg_u32", "vcc_lo", 0)
    k.I("s_cselect_b32", s(S_T0), 1, 0)
    k.I("v_mov_b32", v(t0), s(S_T0))
    k.I("s_lshl_b32", s(S_T1), s(S_WAVE), 2)
    k.I("s_add_u32", s(S_T1), s(S_T1), FLG)
    k.I("v_mov_b32", v(t1), s(S_T1))
    k.I("ds_write_b32", v(t1), v(t0))
    k.I("v_mov_b32", v(t1), FLG)
    k.wait(lgkm=0)
    k.I("s_barrier")
    k.I("ds_read_b128", vr(P, 4), v(t1))
    k.I("ds_read_b128", vr(P + 4, 4), v(t1), mods="offset:16")
    k.I("v_or3_b32", v(t0), v(P), v(P + 1), v(P + 2))
    k.I("v_or3_b32", v(t1), v(P + 3), v(P + 4), v(P + 5))
    k.I("v_or3_b32", v(t0), v(t0), v(P + 6), v(P + 7))
    k.I("v_or_b32", v(t0), v(t0), v(t1))
    k.I("v_readfirstlane_b32", s(S_T0), v(t0))
    k.I("s_cmp_eq_u32", s(S_T0), 0)
    k.I("s_cbranch_scc1", lab_done)
    if EXPF:
        _I("s_branch", lab_done)
    k.I("s_mov_b32", s(S_KVOFF), s(S_KV0))
    k.I("s_mov_b32", s(S_BUF), s(S_W1K))
    issue_dma()
    issue_dma()
    lds_addrs()
    for i in range(16):
        k.I("v_mov_b32", v(O + i), 0)
    k.wait(vm=0)
    k.I("s_barrier")
    slow = attn_pass(True)
    k.I("s_branch", lab_done)

    for (ls, lb, S) in slow:
        k.L(ls)
        both_halves_max()
        k.I("v_max_f32", v(mx), 0, v(mx))
        k.I("v_sub_f32", v(t1), v(mneg), v(mx))
        set_m(t1)
        k.I("v_sub_f32", v(mx), v(mneg), v(t1))
        k.I("v_mov_b32", v(mneg), v(t1))
        k.I("v_sub_f32", v(t0), 0, v(mx))
        k.I("v_exp_f32", v(t0), v(t0))
        for i in range(16):
            k.I("v_sub_f32", v(S + i), v(S + i), v(mx))
        for i in range(16):
            k.I("v_mul_f32", v(O + i), v(O + i), v(t0))
        k.I("s_branch", lb)

    k.L(lab_done)
    k.stampv("done")
    k.I("v_mov_b32", v(t0), v(O + 10))
    k.I("v_mov_b32", v(t1), v(O + 10))
    k.I("v_permlane32_swap_b32", v(t0), v(t1))
    k.I("v_rcp_f32", v(t0), v(t0))
    for i in range(10):
        k.I("v_mul_f32", v(O + i), v(O + i), v(t0))
    for i in range(5):
        k.I("v_cvt_pk_bf16_f32", v(P + i), v(O + 2 * i), v(O + 2 * i + 1))
    k.I("s_lshl_b32", s(S_T0), s(S_QT), 8)
    k.I("s_lshl_b32", s(S_T1), s(S_WAVE), 5)
    k.I("s_add_u32", s(S_T0), s(S_T0), s(S_T1))
    k.I("s_mul_i32", s(S_T0), s(S_T0), 1152)
    k.I("s_mul_i32", s(S_T1), s(S_HEAD), 36)
    k.I("s_add_u32", s(S_T0), s(S_T0), s(S_T1))
    k.I("s_add_u32", s(S_T0), s(S_T0), LY.O_OFF)
    k.I("v_mul_u32_u24", v(t1), 1152, v(vq))
    k.I("v_lshl_add_u32", v(t1), v(vh), 3, v(t1))
    for j, dd in enumerate((0, 2, 8, 10)):
        k.I("buffer_store_dword", v(P + j), v(t1), sr(S_WS, 4), s(S_T0), mods="offen offset:%d" % (dd * 2))
    k.I("v_cmp_eq_u32", "vcc", 0, v(vh))
    k.I("s_and_saveexec_b64", sr(S_SAVE, 2), "vcc")
    k.I("buffer_store_dword", v(P + 4), v(t1), sr(S_WS, 4), s(S_T0), mods="offen offset:32")
    k.I("s_mov_b64", "exec", sr(S_SAVE, 2))
    if prof:
        k.stampv("end")
        lx = k.newlabel("nodump")
        k.I("s_cmp_lg_u32", "s2", 100)
        k.I("s_cbranch_scc1", lx)
        k.I("s_cmp_lg_u32", s(S_WAVE), 0)
        k.I("s_cbranch_scc1", lx)
        k.stampv_dump(t0)
        k.L(lx)
    k.I("s_endpgm")


CS = 4416
UOFF = 8 * CS
PB = UOFF + 64 * 144
PSL = 528
PKQ = 16 * PSL
LDS_CONV = PB + 4 * PKQ
NCH = int(os.environ.get("CNCH", "4"))
NCONV = 576 // NCH
S_CH = 17
S_DSK = 32
S_DS = 34
S_KR = 35
S_M0C = 36


def role_conv(k, prof=False):
    R = RA(1, 128)
    if prof:
        k.stamp_init(64)
    k.C("---- role: S4D conv ----")
    vl = R.a(); va_ = R.a(); vh = R.a()
    t = [R.a() for _ in range(8)]
    gl = R.a(4, 4)
    goff = R.a(); lwa = R.a(); vdma = R.a()
    acc = R.a(16, 4)
    AF = [R.a(4, 4) for _ in range(4)]
    BF = [R.a(4, 4) for _ in range(4)]
    VA = R.a(); VB = R.a()
    w = R.a(8, 4)
    E = R.a(4, 4); OD = R.a(4, 4); TQ = R.a(4, 4)
    pwa = R.a(); pra = R.a(); ura = R.a(); vst = R.a()
    k.I("v_and_b32", v(vl), 63, "v0")
    k.I("v_and_b32", v(va_), 31, "v0")
    k.I("v_bfe_u32", v(vh), "v0", 5, 1)
    k.I("v_lshrrev_b32", v(t[0]), 6, "v0")
    k.I("v_readfirstlane_b32", s(S_WAVE), v(t[0]))
    k.I("s_sub_u32", s(S_T0), "s2", 256)
    LG = NCH.bit_length() - 1
    k.I("s_lshl_b32", s(S_CH), s(S_T0), LG)
    k.I("s_lshl_b32", s(S_T1), s(S_T0), LG + 1)
    if NCH == 4:
        k.I("s_load_dwordx2", sr(S_DSK, 2), "s[4:5]", s(S_T1))
    else:
        k.I("s_load_dword", s(S_DSK), "s[4:5]", s(S_T1))
    k.I("v_lshlrev_b32", v(vdma), 4, v(vl))
    k.I("s_mul_i32", s(S_KR), s(S_CH), LY.KRP)
    k.I("s_and_b32", s(S_T1), s(S_WAVE), 1)
    k.I("s_mul_i32", s(S_T1), s(S_T1), LY.KRV)
    k.I("s_add_u32", s(S_KR), s(S_KR), s(S_T1))
    k.I("s_lshr_b32", s(S_T1), s(S_WAVE), 1)
    k.I("s_lshl_b32", s(S_T1), s(S_T1), 2)
    k.I("s_add_u32", s(S_KR), s(S_KR), s(S_T1))
    k.I("s_add_u32", s(S_KR), s(S_KR), LY.KR_OFF)
    k.I("s_mul_i32", s(S_M0C), s(S_WAVE), CS)
    k.I("v_cmp_le_u32", "vcc", 256, "v0")
    k.I("s_mov_b64", sr(S_SAVE2, 2), "vcc")
    k.I("v_subrev_u32", v(t[0]), 256, "v0")
    k.I("v_lshrrev_b32", v(t[1]), 3, v(t[0]))
    k.I("v_mul_u32_u24", v(t[1]), 144, v(t[1]))
    k.I("v_and_b32", v(t[2]), 7, v(t[0]))
    k.I("v_lshl_add_u32", v(t[1]), v(t[2]), 4, v(t[1]))
    k.I("v_add_u32", v(lwa), UOFF + 32 * 144, v(t[1]))
    k.I("v_lshlrev_b32", v(t[1]), 4, v(t[0]))
    k.I("s_lshl_b32", s(S_T1), s(S_CH), 12)
    k.I("s_add_u32", s(S_T1), s(S_T1), LY.XT_OFF)
    k.I("v_add_u32", v(goff), s(S_T1), v(t[1]))

    def prefetch():
        for i in range(4):
            k.I("s_add_u32", "m0", s(S_M0C), i * 1024)
            k.I("s_add_u32", s(S_T1), s(S_KR), i * 1024)
            k.I("buffer_load_dwordx4", v(vdma), sr(S_WS, 4), s(S_T1), mods="offen lds")
        k.I("s_add_u32", s(S_KR), s(S_KR), LY.KRP)
        k.I("s_mov_b64", sr(S_SAVE, 2), "exec")
        k.I("s_mov_b64", "exec", sr(S_SAVE2, 2))
        k.I("buffer_load_dwordx4", vr(gl, 4), v(goff), sr(S_WS, 4), 0, mods="offen")
        k.I("v_add_u32", v(goff), 4096, v(goff))
        k.I("s_mov_b64", "exec", sr(S_SAVE, 2))

    prefetch()
    for r in range(4):
        k.I("v_mov_b32", v(TQ + r), 0)
    k.I("v_cmp_gt_u32", "vcc", 288, "v0")
    k.I("s_and_saveexec_b64", sr(S_SAVE, 2), "vcc")
    k.I("v_lshlrev_b32", v(t[0]), 4, "v0")
    k.I("ds_write_b128", v(t[0]), vr(TQ, 4), mods="offset:%d" % UOFF)
    k.I("s_mov_b64", "exec", sr(S_SAVE, 2))
    k.I("v_cmp_gt_u32", "vcc", 144, "v0")
    k.I("s_and_saveexec_b64", sr(S_SAVE, 2), "vcc")
    k.I("v_mul_u32_u24", v(t[0]), 57, "v0")
    k.I("v_lshrrev_b32", v(t[0]), 10, v(t[0]))
    k.I("v_mul_u32_u24", v(t[1]), 18, v(t[0]))
    k.I("v_sub_u32", v(t[1]), "v0", v(t[1]))
    k.I("v_mul_u32_u24", v(t[0]), CS, v(t[0]))
    k.I("v_lshl_add_u32", v(t[0]), v(t[1]), 4, v(t[0]))
    k.I("ds_write_b128", v(t[0]), vr(TQ, 4), mods="offset:4096")
    k.I("s_mov_b64", "exec", sr(S_SAVE, 2))
    k.I("s_and_b32", s(S_T0), s(S_WAVE), 1)
    k.I("s_lshr_b32", s(S_T1), s(S_WAVE), 1)
    k.I("v_sub_u32", v(t[0]), 2047, v(va_))
    k.I("v_and_b32", v(t[1]), 7, v(t[0]))
    k.I("v_mul_u32_u24", v(t[1]), CS, v(t[1]))
    k.I("v_lshrrev_b32", v(t[0]), 3, v(t[0]))
    k.I("v_add_u32", v(t[0]), v(t[0]), v(vh))
    k.I("s_lshl_b32", s(S_T2), s(S_T0), 2)
    k.I("s_lshl_b32", s(S_T3), s(S_T1), 3)
    k.I("s_add_u32", s(S_T2), s(S_T2), s(S_T3))
    k.I("s_add_u32", s(S_T2), s(S_T2), 224)
    k.I("v_subrev_u32", v(t[0]), s(S_T2), v(t[0]))
    k.I("v_lshl_add_u32", v(VA), v(t[0]), 4, v(t[1]))
    k.I("s_sub_u32", s(S_T2), 4, s(S_T1))
    k.I("v_add_u32", v(t[0]), s(S_T2), v(va_))
    k.I("v_mul_u32_u24", v(t[0]), 144, v(t[0]))
    k.I("v_lshl_add_u32", v(t[0]), v(vh), 4, v(t[0]))
    k.I("v_add_u32", v(VB), UOFF, v(t[0]))
    k.I("s_mul_i32", s(S_T2), s(S_T1), PKQ)
    k.I("s_mul_i32", s(S_T3), s(S_T0), 8 * PSL)
    k.I("s_add_u32", s(S_T2), s(S_T2), s(S_T3))
    k.I("s_add_u32", s(S_T2), s(S_T2), PB)
    k.I("v_mul_u32_u24", v(t[0]), PSL, v(vh))
    k.I("v_lshl_add_u32", v(t[0]), v(va_), 4, v(t[0]))
    k.I("v_add_u32", v(pwa), s(S_T2), v(t[0]))
    k.I("v_and_b32", v(t[0]), 15, v(vl))
    k.I("v_lshrrev_b32", v(t[1]), 4, v(vl))
    k.I("s_lshl_b32", s(S_T2), s(S_WAVE), 2)
    k.I("v_add_u32", v(t[1]), s(S_T2), v(t[1]))
    k.I("v_mul_u32_u24", v(t[2]), PSL, v(t[0]))
    k.I("v_lshl_add_u32", v(t[2]), v(t[1]), 4, v(t[2]))
    k.I("v_add_u32", v(pra), PB, v(t[2]))
    k.I("v_mul_u32_u24", v(t[2]), 144, v(t[1]))
    k.I("v_lshl_add_u32", v(t[2]), v(t[0]), 3, v(t[2]))
    k.I("v_add_u32", v(ura), UOFF + 32 * 144, v(t[2]))
    k.I("v_lshlrev_b32", v(vst), 3, v(vl))
    k.I("s_lshl_b32", s(S_T3), s(S_CH), 12)
    k.I("s_lshl_b32", s(S_T2), s(S_WAVE), 9)
    k.I("s_add_u32", s(S_T3), s(S_T3), s(S_T2))
    k.I("s_add_u32", s(S_T3), s(S_T3), LY.B_OFF)
    k.wait(lgkm=0)

    for c in range(NCH):
        k.stamp('c%d start' % c)
        k.wait(vm=0)
        k.I("s_mov_b64", sr(S_SAVE, 2), "exec")
        k.I("s_mov_b64", "exec", sr(S_SAVE2, 2))
        k.I("ds_write_b128", v(lwa), vr(gl, 4))
        k.I("s_mov_b64", "exec", sr(S_SAVE, 2))
        k.wait(lgkm=0)
        k.I("s_barrier")
        k.stamp('c%d after fill' % c)
        k.I("ds_read_b64", vr(E, 2), v(ura))
        for r in range(16):
            k.I("v_mov_b32", v(acc + r), 0)
        steps = [(j, ks) for j in range(8) for ks in range(4)]

        def rd(idx):
            j, ks = steps[idx]
            k.I("ds_read_b128", vr(AF[idx % 4], 4), v(VA), mods="offset:%d" % (512 * (7 - j) + 32 * ks))
            k.I("ds_read_b128", vr(BF[idx % 4], 4), v(VB), mods="offset:%d" % ((28 - 4 * j) * 144 + 32 * ks))
        for i in range(3):
            rd(i)
        for i in range(len(steps)):
            if i + 3 < len(steps):
                rd(i + 3)
            k.I("v_mfma_f32_32x32x16_bf16", vr(acc, 16), vr(AF[i % 4], 4), vr(BF[i % 4], 4), vr(acc, 16))
        k.stamp('c%d after mfma' % c)
        for g in range(4):
            k.I("ds_write_b128", v(pwa), vr(acc + 4 * g, 4), mods="offset:%d" % (2 * g * PSL))
        k.wait(lgkm=0)
        k.I("s_barrier")
        k.stamp('c%d after partials' % c)
        if c + 1 < NCH:
            prefetch()
        for q in range(4):
            k.I("ds_read_b128", vr(AF[q], 4), v(pra), mods="offset:%d" % (q * PKQ))
        if c == 0:
            k.wait(lgkm=0)
        if c % 2 == 0:
            k.I("s_lshl_b32", s(S_DS), s(S_DSK + c // 2), 16)
        else:
            k.I("s_and_b32", s(S_DS), s(S_DSK + c // 2), "0xffff0000")
        k.I("v_lshlrev_b32", v(w + 4), 16, v(E))
        k.I("v_and_b32", v(w + 5), "0xffff0000", v(E))
        k.I("v_lshlrev_b32", v(w + 6), 16, v(E + 1))
        k.I("v_and_b32", v(w + 7), "0xffff0000", v(E + 1))
        for i in range(4):
            k.I("v_mul_f32", v(w + 4 + i), s(S_DS), v(w + 4 + i))
        k.I("v_cvt_pk_bf16_f32", v(OD + 2), v(w + 4), v(w + 5))
        k.I("v_cvt_pk_bf16_f32", v(OD + 3), v(w + 6), v(w + 7))
        for i in range(4):
            k.I("v_add_f32", v(w + i), v(AF[0] + i), v(AF[1] + i))
            k.I("v_add_f32", v(w + 4 + i), v(AF[2] + i), v(AF[3] + i))
            k.I("v_add_f32", v(w + i), v(w + i), v(w + 4 + i))
        k.I("v_cvt_pk_bf16_f32", v(OD), v(w), v(w + 1))
        k.I("v_cvt_pk_bf16_f32", v(OD + 1), v(w + 2), v(w + 3))
        for i in range(2):
            k.I("v_lshlrev_b32", v(t[2]), 16, v(OD + i))
            k.I("v_lshlrev_b32", v(t[3]), 16, v(OD + 2 + i))
            k.I("v_add_f32", v(t[2]), v(t[2]), v(t[3]))
            k.I("v_and_b32", v(t[3]), "0xffff0000", v(OD + i))
            k.I("v_and_b32", v(t[4]), "0xffff0000", v(OD + 2 + i))
            k.I("v_add_f32", v(t[3]), v(t[3]), v(t[4]))
            k.I("v_cvt_pk_bf16_f32", v(TQ + i), v(t[2]), v(t[3]))
        k.I("buffer_store_dwordx2", vr(TQ, 2), v(vst), sr(S_WS, 4), s(S_T3), mods="offen")
        k.I("s_add_u32", s(S_T3), s(S_T3), 4096)
    k.stamp('end ch')
    if prof:
        k.wait(vm=0)
        k.stamp('stored')
        lx = k.newlabel("nodump")
        k.I("s_cmp_lg_u32", "s2", 300)
        k.I("s_cbranch_scc1", lx)
        k.I("s_cmp_lg_u32", s(S_WAVE), 0)
        k.I("s_cbranch_scc1", lx)
        k.stamp_dump(t[0], t[1])
        k.L(lx)
    k.I("s_endpgm")


def build_k2(conv_only=False, prof=False):
    k = Kernel("k2_kernel")
    prologue_ptrs(k, [(8, 104), (4, 72)])
    lab_exit = k.newlabel("exit")
    lab_conv = k.newlabel("conv")
    k.wait(lgkm=0)
    make_srd(k, S_WS, 8, LY.WS_USED)
    k.I("s_cmp_ge_u32", "s2", 256 + NCONV)
    k.I("s_cbranch_scc1", lab_exit)
    k.I("s_cmp_ge_u32", "s2", 256)
    k.I("s_cbranch_scc1", lab_conv)
    if conv_only:
        k.I("s_endpgm")
    _I0 = k.I
    role_attn(k, prof == 'attn')
    k.I = _I0
    k.L(lab_conv)
    role_conv(k, prof == 'conv')
    k.L(lab_exit)
    k.I("s_endpgm")
    return k, dict(grid=256 + NCONV, block=512, lds=max(LDS_CONV, 3 * KVB))
```

```python
from asmlib import *
import layout as LY

LOG2E = 1.4426950408889634
QSCALE = (18 ** -0.5) * LOG2E


def f32bits(x):
    import struct
    return struct.unpack("<I", struct.pack("<f", x))[0]


class RA:
    def __init__(self, start, limit=256):
        self.n = start
        self.limit = limit

    def a(self, cnt=1, align=1):
        if cnt >= 4:
            align = max(align, 4)
        elif cnt == 2:
            align = max(align, 2)
        self.n = (self.n + align - 1) // align * align
        r = self.n
        self.n += cnt
        assert self.n <= self.limit, "out of registers"
        return r


S_X, S_W, S_WS = 12, 16, 20
S_WAVE = 24
S_XK, S_WKOFF = 25, 26
S_M0X, S_M0W = 27, 28
S_MT, S_NT = 29, 30
S_T0, S_T1, S_T2, S_T3 = 31, 32, 33, 34
S_SAVE = 36
S_H0 = 38
S_S0 = 39
S_C0, S_C1 = 40, 41

XBUF = 8192
WBUF = 9216
STG = XBUF + WBUF
NSTG = 3
LDS_K1 = NSTG * STG


def prologue_ptrs(k, slots):
    for sp, off in slots:
        k.I("s_load_dwordx2", sr(sp, 2), "s[0:1]", off)


def make_srd(k, sd, sp, nbytes):
    k.I("s_mov_b32", s(sd), s(sp))
    k.I("s_mov_b32", s(sd + 1), s(sp + 1))
    k.I("s_mov_b32", s(sd + 2), nbytes)
    k.I("s_mov_b32", s(sd + 3), "0x00020000")


def gemm_mainloop(k, R, orient, nkt, xrow_bytes, wrow_bytes, vt):
    acc = vt["acc"]
    xa = vt["xa"]
    wa = vt["wa"]
    xd = vt["xd"]
    wd = vt["wd"]
    fx = vt["fx"]
    fw = vt["fw"]
    for i in range(72):
        k.I("v_mov_b32", v(acc + i), 0)

    def issue_dma(buf):
        for j in range(2):
            k.I("s_add_u32", "m0", s(S_M0X), buf * STG + j * 1024)
            k.I("buffer_load_dwordx4", v(xd + j), sr(S_X, 4), s(S_XK), mods="offen lds")
        for i in range(2):
            k.I("s_add_u32", "m0", s(S_M0W), buf * STG + i * 4096)
            k.I("buffer_load_dwordx4", v(wd + i), sr(S_W, 4), s(S_WKOFF), mods="offen lds")
        lab = k.newlabel("skipw")
        k.I("s_cmp_ge_u32", s(S_WAVE), 1)
        k.I("s_cbranch_scc1", lab)
        k.I("s_add_u32", "m0", s(S_M0W), buf * STG + 2 * 4096)
        k.I("buffer_load_dwordx4", v(wd + 2), sr(S_W, 4), s(S_WKOFF), mods="offen lds")
        k.L(lab)
        k.I("s_add_u32", s(S_XK), s(S_XK), 64)
        k.I("s_add_u32", s(S_WKOFF), s(S_WKOFF), 32 * wrow_bytes)

    def mfmas(t):
        W = vr(fw + t * 4, 4)
        for st in range(2):
            X = vr(fx + st * 4, 4)
            A = vr(acc + (st * 9 + t) * 4, 4)
            if orient == "NS":
                k.I("v_mfma_f32_16x16x32_bf16", A, W, X, A)
            else:
                k.I("v_mfma_f32_16x16x32_bf16", A, X, W, A)

    issue_dma(0)
    issue_dma(1)
    S_IT = S_C1 + 1
    k.I("s_mov_b32", s(S_IT), 0)
    lab_loop = k.newlabel("gloop")
    k.L(lab_loop)
    for stg in range(3):
        buf = stg
        if stg == 2:
            lw = k.newlabel("gw")
            k.I("s_cmp_lt_u32", s(S_IT), nkt // 3 - 1)
            k.I("s_cbranch_scc1", lw)
            k.I("s_waitcnt", "vmcnt(0)")
            k.L(lw)
        k.I("s_waitcnt", "vmcnt(4)")
        k.I("s_barrier")
        for st in range(2):
            for h in range(2):
                k.I("ds_read_b64", vr(fx + st * 4 + h * 2, 2), v(xa + h), mods="offset:%d" % (buf * STG + st * 1024))
        for t in range(9):
            for h in range(2):
                k.I("ds_read_b64_tr_b16", vr(fw + t * 4 + h * 2, 2), v(wa),
                    mods="offset:%d" % (buf * STG + h * 4608 + t * 32))
        if stg == 0:
            issue_dma(2)
        else:
            ld = k.newlabel("gd")
            k.I("s_cmp_ge_u32", s(S_IT), nkt // 3 - 1)
            k.I("s_cbranch_scc1", ld)
            issue_dma((stg + 2) % 3)
            k.L(ld)
        for t in range(9):
            mfmas(t)
    k.I("s_add_u32", s(S_IT), s(S_IT), 1)
    k.I("s_cmp_lt_u32", s(S_IT), nkt // 3)
    k.I("s_cbranch_scc1", lab_loop)
    return acc


def role_gemm1(k):
    R = RA(1)
    vt = {}
    k.C("---- role: QKV GEMM ----")
    import os
    prof = bool(os.environ.get("K1PROF"))
    if prof:
        vsr = R.a()
        k.stampv_init(vsr, 64)
        k.stampv("start")
    k.I("s_and_b32", s(S_MT), "s2", 15)
    k.I("s_lshr_b32", s(S_NT), "s2", 4)
    vl = R.a(); vi = R.a(); vg = R.a(); t0 = R.a(); t1 = R.a(); t2 = R.a()
    k.I("v_and_b32", v(vl), 63, "v0")
    k.I("v_and_b32", v(vi), 15, "v0")
    k.I("v_lshrrev_b32", v(vg), 4, v(vl))
    k.I("v_lshrrev_b32", v(t0), 6, "v0")
    k.I("v_readfirstlane_b32", s(S_WAVE), v(t0))
    k.I("s_lshl_b32", s(S_T0), s(S_MT), 7)
    k.I("s_mov_b32", s(S_S0), s(S_T0))
    k.I("s_lshl_b32", s(S_T1), s(S_WAVE), 5)
    k.I("s_add_u32", s(S_T0), s(S_T0), s(S_T1))
    k.I("s_mul_i32", s(S_XK), s(S_T0), 1152)
    k.I("s_mul_i32", s(S_WKOFF), s(S_NT), 288)
    k.I("s_lshl_b32", s(S_M0X), s(S_WAVE), 11)
    k.I("s_lshl_b32", s(S_M0W), s(S_WAVE), 10)
    k.I("s_add_u32", s(S_M0W), s(S_M0W), XBUF)
    xd = R.a(2); vt["xd"] = xd
    k.I("v_lshrrev_b32", v(t0), 2, v(vl))
    k.I("s_mov_b32", s(S_T2), 1152)
    k.I("v_mul_lo_u32", v(t0), v(t0), s(S_T2))
    k.I("v_and_b32", v(t1), 3, v(vl))
    k.I("v_xor_b32", v(t1), v(t1), v(vg))
    k.I("v_lshl_add_u32", v(xd), v(t1), 4, v(t0))
    k.I("v_add_u32", v(xd + 1), 16 * 1152, v(xd))
    wd = R.a(3); vt["wd"] = wd
    k.I("s_mov_b32", s(S_T3), 3456)
    k.I("s_movk_i32", s(S_T2), 3641)
    for i in range(3):
        k.I("v_add_u32", v(t0), 256 * i, "v0")
        k.I("v_mul_lo_u32", v(t1), v(t0), s(S_T2))
        k.I("v_lshrrev_b32", v(t1), 16, v(t1))
        k.I("v_mul_u32_u24", v(t2), 18, v(t1))
        k.I("v_sub_u32", v(t2), v(t0), v(t2))
        k.I("v_mul_lo_u32", v(t1), v(t1), s(S_T3))
        k.I("v_lshl_add_u32", v(wd + i), v(t2), 4, v(t1))
    xa = R.a(2); vt["xa"] = xa
    k.I("v_lshlrev_b32", v(t0), 5, s(S_WAVE))
    k.I("v_add_u32", v(t0), v(t0), v(vi))
    k.I("v_lshlrev_b32", v(t0), 6, v(t0))
    k.I("v_and_b32", v(t1), 1, v(vg))
    k.I("v_lshl_add_u32", v(t0), v(t1), 3, v(t0))
    k.I("v_lshrrev_b32", v(t1), 2, v(vi))
    k.I("v_lshrrev_b32", v(t2), 1, v(vg))
    k.I("v_xor_b32", v(t1), v(t1), v(t2))
    k.I("v_lshl_add_u32", v(xa), v(t1), 4, v(t0))
    k.I("v_xor_b32", v(xa + 1), 32, v(xa))
    wa = R.a(); vt["wa"] = wa
    k.I("v_lshrrev_b32", v(t0), 2, v(vi))
    k.I("v_lshl_add_u32", v(t0), v(vg), 2, v(t0))
    k.I("v_mul_u32_u24", v(t0), 288, v(t0))
    k.I("v_and_b32", v(t1), 3, v(vi))
    k.I("v_lshl_add_u32", v(t0), v(t1), 3, v(t0))
    k.I("v_add_u32", v(wa), XBUF, v(t0))
    vt["acc"] = R.a(72, 4)
    vt["fx"] = R.a(8, 4)
    vt["fw"] = R.a(36, 4)
    acc = vt["acc"]
    tmp = vt["fw"]

    lab_v = k.newlabel("vpath")
    lab_end = k.newlabel("gend")
    k.I("s_cmp_ge_u32", s(S_NT), 8)
    k.I("s_cbranch_scc1", lab_v)
    k.stampv("pre main")
    gemm_mainloop(k, R, "NS", 18, 1152, 3456, vt)
    k.stampv("post main")
    k.I("s_barrier")
    k.I("s_cmp_lt_u32", s(S_NT), 4)
    k.I("s_cselect_b32", s(S_C0), f32bits(QSCALE), f32bits(1.0))
    k.I("s_cselect_b32", s(S_C1), 0, "0x3F803F80")
    rb = t0
    k.I("v_lshlrev_b32", v(rb), 5, s(S_WAVE))
    k.I("v_add_u32", v(rb), v(rb), v(vi))
    k.I("v_mul_u32_u24", v(rb), 400, v(rb))
    for t in range(9):
        for j in range(2):
            nreg = t1
            k.I("v_lshlrev_b32", v(nreg), 2, v(vg))
            k.I("v_add_u32", v(nreg), 16 * t + 2 * j, v(nreg))
            k.I("v_mul_u32_u24", v(t2), 57, v(nreg))
            k.I("v_lshrrev_b32", v(t2), 10, v(t2))
            k.I("v_mul_u32_u24", v(t2), 12, v(t2))
            k.I("v_lshl_add_u32", v(t2), v(nreg), 1, v(t2))
            k.I("v_add_u32", v(t2), v(t2), v(rb))
            for st in range(2):
                a = acc + (st * 9 + t) * 4 + 2 * j
                d = tmp + ((t * 2 + j) * 2 + st) % 32
                k.I("v_mul_f32", v(a), s(S_C0), v(a))
                k.I("v_mul_f32", v(a + 1), s(S_C0), v(a + 1))
                k.I("v_cvt_pk_bf16_f32", v(d), v(a), v(a + 1))
                k.I("ds_write_b32", v(t2), v(d), mods="offset:%d" % (st * 6400))
    k.I("v_and_b32", v(t1), 127, "v0")
    k.I("v_mul_u32_u24", v(t1), 400, v(t1))
    k.I("v_lshrrev_b32", v(t2), 7, "v0")
    k.I("v_mul_u32_u24", v(t2), 48, v(t2))
    k.I("v_add_u32", v(t1), v(t1), v(t2))
    k.I("v_mov_b32", v(tmp), s(S_C1))
    k.I("v_mov_b32", v(tmp + 1), 0)
    for i in range(4):
        k.I("ds_write_b32", v(t1), v(tmp), mods="offset:%d" % (36 + 96 * i))
        k.I("ds_write_b32", v(t1), v(tmp + 1), mods="offset:%d" % (40 + 96 * i))
        k.I("ds_write_b32", v(t1), v(tmp + 1), mods="offset:%d" % (44 + 96 * i))
    k.wait(lgkm=0)
    k.I("s_barrier")
    k.I("s_and_b32", s(S_H0), s(S_NT), 3)
    k.I("s_lshl_b32", s(S_H0), s(S_H0), 3)
    lab_k = k.newlabel("kpath")
    k.I("s_cmp_ge_u32", s(S_NT), 4)
    k.I("s_cbranch_scc1", lab_k)
    k.I("v_lshrrev_b32", v(t0), 2, "v0")
    k.I("v_and_b32", v(t1), 3, "v0")
    k.I("v_mul_u32_u24", v(t2), 400, v(t0))
    k.I("v_lshl_add_u32", v(t2), v(t1), 4, v(t2))
    k.I("v_lshlrev_b32", v(t0), 6, v(t0))
    k.I("v_lshl_add_u32", v(t0), v(t1), 4, v(t0))
    k.I("v_cmp_eq_u32", "vcc", 3, v(t1))
    k.I("s_lshl_b32", s(S_T0), s(S_H0), 11)
    k.I("s_add_u32", s(S_T0), s(S_T0), s(S_S0))
    k.I("s_lshl_b32", s(S_T0), s(S_T0), 6)
    k.I("s_add_u32", s(S_T0), s(S_T0), LY.QP_OFF)
    for it in range(16):
        hl, half = it >> 1, it & 1
        d = tmp + (it % 4) * 4
        k.I("ds_read_b128", vr(d, 4), v(t2), mods="offset:%d" % (half * 64 * 400 + hl * 48))
        for r in range(4):
            k.I("v_cndmask_b32", v(d + r), v(d + r), 0, "vcc") if False else k.I("v_cndmask_b32", v(d + r), v(d + r), "0", "vcc")
        k.I("s_add_u32", s(S_T1), s(S_T0), hl * 2048 * 64 + half * 64 * 64)
        k.I("buffer_store_dwordx4", vr(d, 4), v(t0), sr(S_WS, 4), s(S_T1), mods="offen")
    k.I("s_branch", lab_end)
    k.L(lab_k)
    k.I("s_lshr_b32", s(S_T0), s(S_S0), 8)
    k.I("s_lshl_b32", s(S_T1), s(S_H0), 3)
    k.I("s_add_u32", s(S_T0), s(S_T0), s(S_T1))
    k.I("s_mul_i32", s(S_T0), s(S_T0), LY.KVREC)
    k.I("s_and_b32", s(S_T1), s(S_S0), 255)
    k.I("s_mul_i32", s(S_T1), s(S_T1), 48)
    k.I("s_add_u32", s(S_T0), s(S_T0), s(S_T1))
    k.I("s_add_u32", s(S_T0), s(S_T0), LY.KV_OFF)
    la = [R.a() for _ in range(3)]
    ga = [R.a() for _ in range(3)]
    for j in range(3):
        k.I("v_add_u32", v(t0), 256 * j, "v0")
        k.I("v_cmp_le_u32", "vcc", 384, v(t0))
        k.I("v_cndmask_b32", v(t1), 0, 1, "vcc")
        k.I("v_mul_u32_u24", v(t2), 384, v(t1))
        k.I("v_sub_u32", v(t0), v(t0), v(t2))
        k.I("v_mul_u32_u24", v(t2), 171, v(t0))
        k.I("v_lshrrev_b32", v(t2), 9, v(t2))
        k.I("v_mul_u32_u24", v(la[j]), 400, v(t2))
        k.I("v_mul_u32_u24", v(t2), 3, v(t2))
        k.I("v_sub_u32", v(t2), v(t0), v(t2))
        k.I("v_lshl_add_u32", v(la[j]), v(t2), 4, v(la[j]))
        k.I("v_mul_u32_u24", v(t2), 48, v(t1))
        k.I("v_add_u32", v(la[j]), v(la[j]), v(t2))
        k.I("s_mov_b32", s(S_T1), 8 * LY.KVREC)
        k.I("v_mul_lo_u32", v(ga[j]), v(t1), s(S_T1))
        k.I("v_lshl_add_u32", v(ga[j]), v(t0), 4, v(ga[j]))
    for hp2 in range(4):
        for j in range(3):
            d = tmp + ((hp2 * 3 + j) % 4) * 4
            k.I("ds_read_b128", vr(d, 4), v(la[j]), mods="offset:%d" % (hp2 * 96))
            k.I("s_add_u32", s(S_T1), s(S_T0), hp2 * 2 * 8 * LY.KVREC)
            k.I("buffer_store_dwordx4", vr(d, 4), v(ga[j]), sr(S_WS, 4), s(S_T1), mods="offen")
    k.I("s_branch", lab_end)

    k.L(lab_v)
    gemm_mainloop(k, R, "SN", 18, 1152, 3456, vt)
    k.I("s_barrier")
    VP = 272
    k.I("v_and_b32", v(t0), 1, v(vg))
    k.I("v_lshlrev_b32", v(t0), 3, v(t0))
    k.I("v_and_b32", v(t1), 2, v(vg))
    k.I("v_lshl_add_u32", v(t0), v(t1), 1, v(t0))
    k.I("v_lshl_add_u32", v(t0), s(S_WAVE), 5, v(t0))
    k.I("v_lshlrev_b32", v(t0), 1, v(t0))
    k.I("v_mul_u32_u24", v(t1), VP, v(vi))
    k.I("v_add_u32", v(t0), v(t0), v(t1))
    for st in range(2):
        for t in range(9):
            a = acc + (st * 9 + t) * 4
            d = tmp + ((st * 9 + t) % 16) * 2
            k.I("v_cvt_pk_bf16_f32", v(d), v(a), v(a + 1))
            k.I("v_cvt_pk_bf16_f32", v(d + 1), v(a + 2), v(a + 3))
            k.I("ds_write_b64", v(t0), vr(d, 2), mods="offset:%d" % (t * 16 * VP + st * 32))
    k.wait(lgkm=0)
    k.I("s_barrier")
    k.I("s_and_b32", s(S_H0), s(S_NT), 3)
    k.I("s_lshl_b32", s(S_H0), s(S_H0), 3)
    k.I("s_lshr_b32", s(S_T0), s(S_S0), 8)
    k.I("s_lshl_b32", s(S_T1), s(S_H0), 3)
    k.I("s_add_u32", s(S_T0), s(S_T0), s(S_T1))
    k.I("s_mul_i32", s(S_T0), s(S_T0), LY.KVREC)
    k.I("s_and_b32", s(S_T1), s(S_S0), 255)
    k.I("s_lshl_b32", s(S_T1), s(S_T1), 1)
    k.I("s_add_u32", s(S_T0), s(S_T0), s(S_T1))
    k.I("s_add_u32", s(S_T0), s(S_T0), LY.KV_OFF + LY.KPART)
    k.I("v_lshrrev_b32", v(t0), 4, "v0")
    k.I("v_and_b32", v(t1), 15, "v0")
    k.I("v_lshlrev_b32", v(t1), 4, v(t1))
    k.I("s_mov_b32", s(S_T2), 8 * LY.KVREC)
    for it in range(9):
        d = tmp + (it % 4) * 4
        la_, ga_ = tmp + 16, tmp + 17
        k.I("v_add_u32", v(t2), 16 * it, v(t0))
        k.I("v_mul_u32_u24", v(la_), VP, v(t2))
        k.I("v_add_u32", v(la_), v(la_), v(t1))
        k.I("ds_read_b128", vr(d, 4), v(la_))
        k.I("v_mul_u32_u24", v(ga_), 57, v(t2))
        k.I("v_lshrrev_b32", v(ga_), 10, v(ga_))
        k.I("v_mul_u32_u24", v(la_), 18, v(ga_))
        k.I("v_sub_u32", v(t2), v(t2), v(la_))
        k.I("v_mul_lo_u32", v(ga_), v(ga_), s(S_T2))
        k.I("v_mul_u32_u24", v(t2), LY.VPITCH, v(t2))
        k.I("v_add_u32", v(ga_), v(ga_), v(t2))
        k.I("v_add_u32", v(ga_), v(ga_), v(t1))
        k.I("buffer_store_dwordx4", vr(d, 4), v(ga_), sr(S_WS, 4), s(S_T0), mods="offen")
    k.I("v_cmp_gt_u32", "vcc", 128, "v0")
    k.I("s_and_saveexec_b64", sr(S_SAVE, 2), "vcc")
    k.I("v_mul_lo_u32", v(t2), v(t0), s(S_T2))
    k.I("v_add_u32", v(t2), 18 * LY.VPITCH, v(t2))
    k.I("v_add_u32", v(t2), v(t2), v(t1))
    for r in range(4):
        k.I("v_mov_b32", v(tmp + r), "0x3F803F80")
    k.I("buffer_store_dwordx4", vr(tmp, 4), v(t2), sr(S_WS, 4), s(S_T0), mods="offen")
    k.I("s_mov_b64", "exec", sr(S_SAVE, 2))
    k.L(lab_end)
    k.wait(vm=0)
    if prof:
        k.stampv("end")
        lx = k.newlabel("nodump")
        k.I("s_cmp_lg_u32", "s2", 0)
        k.I("s_cbranch_scc1", lx)
        k.I("s_cmp_lg_u32", s(S_WAVE), 0)
        k.I("s_cbranch_scc1", lx)
        k.stampv_dump(t0)
        k.L(lx)
        k.sv_reg = None
    k.I("s_endpgm")


INV2PI = 0.15915494309189535


def bf16_round_f32(k, dst, src, tmp):
    k.I("v_cvt_pk_bf16_f32", v(tmp), v(src), v(src))
    k.I("v_lshlrev_b32", v(dst), 16, v(tmp))


def role_gate(k):
    R = RA(1)
    k.C("---- role: gate ----")
    vl = R.a(); t0 = R.a(); t1 = R.a(); t2 = R.a()
    gw = R.a(9); xv = R.a(9); accv = R.a(); res = R.a()
    k.I("v_and_b32", v(vl), 63, "v0")
    k.I("v_lshrrev_b32", v(t0), 6, "v0")
    k.I("v_readfirstlane_b32", s(S_WAVE), v(t0))
    k.I("v_lshlrev_b32", v(t0), 1, v(vl))
    for j in range(9):
        k.I("buffer_load_ushort", v(gw + j), v(t0), sr(S_W, 4), 0, mods="offen offset:%d" % (128 * j))
    k.I("s_sub_u32", s(S_T0), "s2", 1056)
    k.I("s_lshl_b32", s(S_T0), s(S_T0), 5)
    k.I("s_lshl_b32", s(S_T1), s(S_WAVE), 3)
    k.I("s_add_u32", s(S_T0), s(S_T0), s(S_T1))
    k.I("s_mul_i32", s(S_T2), s(S_T0), 1152)
    k.I("v_mov_b32", v(res), 0)
    for j in range(9):
        k.I("v_lshlrev_b32", v(gw + j), 16, v(gw + j))
    for r in range(8):
        for j in range(9):
            k.I("buffer_load_ushort", v(xv + j), v(t0), sr(S_X, 4), s(S_T2), mods="offen offset:%d" % (128 * j))
        k.I("s_add_u32", s(S_T2), s(S_T2), 1152)
        k.I("v_mov_b32", v(accv), 0)
        for j in range(9):
            k.I("v_lshlrev_b32", v(t1), 16, v(xv + j))
            k.I("v_mul_f32", v(t1), v(t1), v(gw + j))
            k.I("v_cvt_pk_bf16_f32", v(t1), v(t1), v(t1))
            k.I("v_lshlrev_b32", v(t1), 16, v(t1))
            k.I("v_add_f32", v(accv), v(accv), v(t1))
        k.I("v_add_f32", v(accv), v(accv), v(accv), mods="quad_perm:[1,0,3,2] row_mask:0xf bank_mask:0xf")
        k.I("v_add_f32", v(accv), v(accv), v(accv), mods="quad_perm:[2,3,0,1] row_mask:0xf bank_mask:0xf")
        k.I("v_add_f32", v(accv), v(accv), v(accv), mods="row_half_mirror row_mask:0xf bank_mask:0xf")
        k.I("v_add_f32", v(accv), v(accv), v(accv), mods="row_mirror row_mask:0xf bank_mask:0xf")
        k.I("v_readlane_b32", s(S_T1), v(accv), 0)
        k.I("v_readlane_b32", s(S_T3), v(accv), 16)
        k.I("v_readlane_b32", s(S_C0), v(accv), 32)
        k.I("v_readlane_b32", s(S_C1), v(accv), 48)
        k.I("v_mov_b32", v(t1), s(S_T1))
        k.I("v_add_f32", v(t1), s(S_T3), v(t1))
        k.I("v_add_f32", v(t1), s(S_C0), v(t1))
        k.I("v_add_f32", v(t1), s(S_C1), v(t1))
        k.I("v_cmp_eq_u32", "vcc", r, v(vl))
        k.I("v_cndmask_b32", v(res), v(res), v(t1), "vcc")
    bf16_round_f32(k, res, res, t1)
    k.I("v_mul_f32", v(t1), f32bits(-LOG2E), v(res))
    k.I("v_exp_f32", v(t1), v(t1))
    k.I("v_add_f32", v(t1), 1.0, v(t1))
    k.I("v_rcp_f32", v(t1), v(t1))
    bf16_round_f32(k, t1, t1, t2)
    k.I("v_cmp_gt_u32", "vcc", 8, v(vl))
    k.I("s_and_saveexec_b64", sr(S_SAVE, 2), "vcc")
    k.I("s_lshl_b32", s(S_T0), s(S_T0), 2)
    k.I("s_add_u32", s(S_T0), s(S_T0), LY.G_OFF)
    k.I("v_lshlrev_b32", v(t2), 2, v(vl))
    k.I("buffer_store_dword", v(t1), v(t2), sr(S_WS, 4), s(S_T0), mods="offen")
    k.I("s_mov_b64", "exec", sr(S_SAVE, 2))
    k.I("s_endpgm")


def role_xt(k):
    R = RA(1)
    k.C("---- role: x transpose ----")
    P = 144
    vl = R.a(); vi = R.a(); vg = R.a(); t0 = R.a(); t1 = R.a(); t2 = R.a()
    d0 = R.a(8, 4)
    k.I("v_and_b32", v(vl), 63, "v0")
    k.I("v_and_b32", v(vi), 15, "v0")
    k.I("v_lshrrev_b32", v(vg), 4, v(vl))
    k.I("v_lshrrev_b32", v(t0), 6, "v0")
    k.I("v_readfirstlane_b32", s(S_WAVE), v(t0))
    k.I("s_sub_u32", s(S_T0), "s2", 768)
    k.I("s_and_b32", s(S_MT), s(S_T0), 31)
    k.I("s_lshr_b32", s(S_NT), s(S_T0), 5)
    k.I("v_lshrrev_b32", v(t0), 3, "v0")
    k.I("v_and_b32", v(t1), 7, "v0")
    k.I("v_mul_u32_u24", v(t2), 1152, v(t0))
    k.I("v_lshl_add_u32", v(t2), v(t1), 4, v(t2))
    k.I("s_mul_i32", s(S_T1), s(S_MT), 64 * 1152)
    k.I("s_lshl_b32", s(S_T2), s(S_NT), 7)
    k.I("s_add_u32", s(S_T1), s(S_T1), s(S_T2))
    k.I("s_add_u32", s(S_T2), s(S_T1), 32 * 1152)
    k.I("buffer_load_dwordx4", vr(d0, 4), v(t2), sr(S_X, 4), s(S_T1), mods="offen")
    k.I("buffer_load_dwordx4", vr(d0 + 4, 4), v(t2), sr(S_X, 4), s(S_T2), mods="offen")
    k.I("v_mul_u32_u24", v(t0), P, v(t0))
    k.I("v_lshl_add_u32", v(t0), v(t1), 4, v(t0))
    k.I("ds_write_b128", v(t0), vr(d0, 4))
    k.I("ds_write_b128", v(t0), vr(d0 + 4, 4), mods="offset:%d" % (32 * P))
    k.wait(lgkm=0)
    k.I("s_barrier")
    k.I("v_lshrrev_b32", v(t0), 2, v(vi))
    k.I("v_lshl_add_u32", v(t0), v(vg), 3, v(t0))
    k.I("v_mul_u32_u24", v(t0), P, v(t0))
    k.I("v_and_b32", v(t1), 3, v(vi))
    k.I("v_lshl_add_u32", v(t0), v(t1), 3, v(t0))
    k.I("s_lshl_b32", s(S_T1), s(S_WAVE), 5)
    k.I("v_add_u32", v(t0), s(S_T1), v(t0))
    for half in range(2):
        for q in range(2):
            k.I("ds_read_b64_tr_b16", vr(d0 + half * 4 + q * 2, 2), v(t0), mods="offset:%d" % ((32 * half + 4 * q) * P))
    k.I("v_lshlrev_b32", v(t1), 12, v(vi))
    k.I("v_lshl_add_u32", v(t1), v(vg), 4, v(t1))
    k.I("s_lshl_b32", s(S_T1), s(S_NT), 6)
    k.I("s_lshl_b32", s(S_T2), s(S_WAVE), 4)
    k.I("s_add_u32", s(S_T1), s(S_T1), s(S_T2))
    k.I("s_lshl_b32", s(S_T1), s(S_T1), 12)
    k.I("s_lshl_b32", s(S_T2), s(S_MT), 7)
    k.I("s_add_u32", s(S_T1), s(S_T1), s(S_T2))
    k.I("s_add_u32", s(S_T1), s(S_T1), LY.XT_OFF)
    k.I("buffer_store_dwordx4", vr(d0, 4), v(t1), sr(S_WS, 4), s(S_T1), mods="offen")
    k.I("buffer_store_dwordx4", vr(d0 + 4, 4), v(t1), sr(S_WS, 4), s(S_T1), mods="offen offset:64")
    k.I("s_endpgm")


def role_kgen(k):
    R = RA(1)
    k.C("---- role: S4D kernel table generation ----")
    vl = R.a(); vi = R.a(); vg = R.a()
    t = [R.a() for _ in range(12)]
    prm = R.a(4, 4)
    pc = R.a(); pf = R.a()
    acc = R.a(4, 4)
    Ah = R.a(4, 4); Al = R.a(4, 4); Bh = R.a(4, 4); Bl = R.a(4, 4)
    k.I("v_and_b32", v(vl), 63, "v0")
    k.I("v_and_b32", v(vi), 15, "v0")
    k.I("v_lshrrev_b32", v(vg), 4, v(vl))
    k.I("v_lshrrev_b32", v(t[0]), 6, "v0")
    k.I("v_readfirstlane_b32", s(S_WAVE), v(t[0]))
    k.I("s_sub_u32", s(S_MT), "s2", 192)
    k.I("v_and_b32", v(t[0]), 127, "v0")
    k.I("v_lshlrev_b32", v(t[0]), 1, v(t[0]))
    k.I("s_lshl_b32", s(S_T0), s(S_MT), 8)
    for j, srd in enumerate((44, 48, 52, 56)):
        k.I("buffer_load_ushort", v(t[1 + j]), v(t[0]), sr(srd, 4), s(S_T0), mods="offen")
    k.I("s_lshl_b32", s(S_T1), s(S_MT), 1)
    k.I("v_mov_b32", v(t[5]), 0)
    k.I("buffer_load_ushort", v(t[5]), v(t[5]), sr(60, 4), s(S_T1), mods="offen")
    for j in range(1, 6):
        k.I("v_lshlrev_b32", v(t[j]), 16, v(t[j]))
    k.I("v_mul_f32", v(t[5]), f32bits(LOG2E), v(t[5]))
    k.I("v_exp_f32", v(t[5]), v(t[5]))
    bf16_round_f32(k, t[5], t[5], t[6])
    k.I("v_mul_f32", v(t[1]), f32bits(LOG2E), v(t[1]))
    k.I("v_exp_f32", v(t[1]), v(t[1]))
    bf16_round_f32(k, t[1], t[1], t[6])
    k.I("v_mul_f32", v(prm), v(t[1]), v(t[5]))
    k.I("v_mul_f32", v(prm), f32bits(-LOG2E), v(prm))
    k.I("v_mul_f32", v(prm + 1), v(t[2]), v(t[5]))
    k.I("v_mul_f32", v(prm + 1), f32bits(INV2PI), v(prm + 1))
    k.I("v_mul_f32", v(prm + 2), v(t[3]), v(t[5]))
    k.I("v_add_f32", v(prm + 2), v(prm + 2), v(prm + 2))
    k.I("v_mul_f32", v(prm + 3), v(t[4]), v(t[5]))
    k.I("v_add_f32", v(prm + 3), v(prm + 3), v(prm + 3))
    k.I("v_lshlrev_b32", v(t[0]), 3, v(t[0]))
    k.I("ds_write_b128", v(t[0]), vr(prm, 4))
    k.wait(lgkm=0)
    k.I("s_barrier")
    pcs = [pc, R.a(), R.a()]
    k.I("v_lshlrev_b32", v(pf), 3, v(vi))
    k.I("v_lshrrev_b32", v(t[0]), 3, v(vi))
    k.I("v_lshlrev_b32", v(t[0]), 7, v(t[0]))
    k.I("v_and_b32", v(t[1]), 7, v(vi))
    k.I("v_add_u32", v(pcs[0]), v(t[0]), v(t[1]))
    k.I("v_lshrrev_b32", v(t[0]), 2, v(vi))
    k.I("v_lshlrev_b32", v(t[0]), 7, v(t[0]))
    k.I("v_and_b32", v(t[1]), 3, v(vi))
    k.I("v_lshl_add_u32", v(t[0]), v(t[1]), 1, v(t[0]))
    k.I("v_add_u32", v(t[0]), 256, v(t[0]))
    k.I("v_lshrrev_b32", v(t[1]), 1, v(vi))
    k.I("v_lshlrev_b32", v(t[1]), 7, v(t[1]))
    k.I("v_and_b32", v(t[2]), 1, v(vi))
    k.I("v_lshl_add_u32", v(t[1]), v(t[2]), 2, v(t[1]))
    k.I("v_cmp_gt_u32", "vcc", 8, v(vi))
    k.I("v_cndmask_b32", v(pcs[1]), v(t[1]), v(t[0]), "vcc")
    k.I("v_lshlrev_b32", v(pcs[2]), 7, v(vi))
    k.I("v_add_u32", v(pcs[2]), 1024, v(pcs[2]))
    for r in [pf] + pcs:
        k.I("v_cvt_f32_u32", v(r), v(r))
    accs = [acc, R.a(4, 4), R.a(4, 4)]
    for a_ in accs:
        for r in range(4):
            k.I("v_mov_b32", v(a_ + r), 0)
    pa = R.a()
    k.I("v_lshlrev_b32", v(pa), 6, v(vg))
    k.I("s_lshl_b32", s(S_T0), s(S_WAVE), 9)
    k.I("v_add_u32", v(pa), s(S_T0), v(pa))
    P = [R.a(4, 4) for _ in range(4)]

    def cexp(pos, pr, er, ei, tm):
        k.I("v_mul_f32", v(er), v(pr), v(pos))
        k.I("v_exp_f32", v(er), v(er))
        k.I("v_mul_f32", v(tm), v(pr + 1), v(pos))
        k.I("v_fract_f32", v(tm), v(tm))
        k.I("v_sin_f32", v(ei), v(tm))
        k.I("v_cos_f32", v(tm), v(tm))
        k.I("v_mul_f32", v(ei), v(er), v(ei))
        k.I("v_mul_f32", v(er), v(er), v(tm))

    def split(hi, lo, a, b, ta, tb):
        k.I("v_cvt_pk_bf16_f32", v(hi), v(a), v(b))
        k.I("v_lshlrev_b32", v(ta), 16, v(hi))
        k.I("v_and_b32", v(tb), "0xffff0000", v(hi))
        k.I("v_sub_f32", v(ta), v(a), v(ta))
        k.I("v_sub_f32", v(tb), v(b), v(tb))
        k.I("v_cvt_pk_bf16_f32", v(lo), v(ta), v(tb))

    for m in range(2):
        for q in range(4):
            k.I("ds_read_b128", vr(P[q], 4), v(pa), mods="offset:%d" % ((16 * m + q) * 16))
        for q in range(4):
            fr, fi = t[7], t[8]
            cexp(pf, P[q], fr, fi, t[9])
            split(Bh + q, Bl + q, fr, fi, t[10], t[11])
        for tl in range(3):
            for q in range(4):
                pr = P[q]
                er, ei, tm, gr, gi = t[0], t[1], t[2], t[3], t[4]
                cexp(pcs[tl], pr, er, ei, tm)
                k.I("v_mul_f32", v(gr), v(pr + 2), v(er))
                k.I("v_fma_f32", v(gr), "-" + v(pr + 3), v(ei), v(gr))
                k.I("v_mul_f32", v(gi), v(pr + 2), v(ei))
                k.I("v_fma_f32", v(gi), v(pr + 3), v(er), v(gi))
                k.I("v_sub_f32", v(gi), 0, v(gi))
                split(Ah + q, Al + q, gr, gi, t[5], t[6])
            a_ = accs[tl]
            k.I("v_mfma_f32_16x16x32_bf16", vr(a_, 4), vr(Ah, 4), vr(Bh, 4), vr(a_, 4))
            k.I("v_mfma_f32_16x16x32_bf16", vr(a_, 4), vr(Ah, 4), vr(Bl, 4), vr(a_, 4))
            k.I("v_mfma_f32_16x16x32_bf16", vr(a_, 4), vr(Al, 4), vr(Bh, 4), vr(a_, 4))
    TB = 2048
    PBK = 8192
    k.I("v_lshlrev_b32", v(t[0]), 4, v(vl))
    k.I("s_mul_i32", s(S_T0), s(S_WAVE), 3072)
    k.I("v_add_u32", v(t[1]), s(S_T0), v(t[0]))
    for tl in range(3):
        k.I("ds_write_b128", v(t[1]), vr(accs[tl], 4), mods="offset:%d" % (PBK + 1024 * tl))
    k.wait(lgkm=0)
    k.I("s_barrier")
    lab_t3 = k.newlabel("kg_t3")
    k.I("s_cmp_ge_u32", s(S_WAVE), 3)
    k.I("s_cbranch_scc1", lab_t3)
    k.I("s_lshl_b32", s(S_T0), s(S_WAVE), 10)
    k.I("v_add_u32", v(t[1]), s(S_T0), v(t[0]))
    for w_ in range(4):
        k.I("ds_read_b128", vr(P[w_], 4), v(t[1]), mods="offset:%d" % (PBK + 3072 * w_))
    for r in range(4):
        k.I("v_add_f32", v(P[0] + r), v(P[0] + r), v(P[1] + r))
        k.I("v_add_f32", v(P[2] + r), v(P[2] + r), v(P[3] + r))
        k.I("v_add_f32", v(P[0] + r), v(P[0] + r), v(P[2] + r))
    ib = t[2]
    lab_t1 = k.newlabel("kg_t1"); lab_t2 = k.newlabel("kg_t2"); lab_tw = k.newlabel("kg_tw")
    inc = [t[3], t[4], t[5]]
    k.I("s_cmp_eq_u32", s(S_WAVE), 1)
    k.I("s_cbranch_scc1", lab_t1)
    k.I("s_cmp_eq_u32", s(S_WAVE), 2)
    k.I("s_cbranch_scc1", lab_t2)
    k.I("v_lshrrev_b32", v(ib), 1, v(vg))
    k.I("v_lshlrev_b32", v(ib), 7, v(ib))
    k.I("v_and_b32", v(t[6]), 1, v(vg))
    k.I("v_lshl_add_u32", v(ib), v(t[6]), 2, v(ib))
    k.I("v_lshl_add_u32", v(ib), v(vi), 3, v(ib))
    for r in range(3):
        k.I("v_mov_b32", v(inc[r]), 4 * (r + 1))
    k.I("s_branch", lab_tw)
    k.L(lab_t1)
    k.I("v_lshlrev_b32", v(ib), 6, v(vg))
    k.I("v_add_u32", v(ib), 256, v(ib))
    k.I("v_cmp_gt_u32", "vcc", 2, v(vg))
    k.I("v_cndmask_b32", v(t[6]), 1, 2, "vcc")
    k.I("v_lshlrev_b32", v(t[6]), v(t[6]), v(vi))
    k.I("v_add_u32", v(ib), v(ib), v(t[6]))
    k.I("v_mov_b32", v(inc[0]), 4)
    k.I("v_mov_b32", v(inc[1]), 128)
    k.I("v_cndmask_b32", v(inc[1]), v(inc[1]), 8, "vcc")
    k.I("v_mov_b32", v(t[6]), 132)
    k.I("v_cndmask_b32", v(inc[2]), v(t[6]), 12, "vcc")
    k.I("s_branch", lab_tw)
    k.L(lab_t2)
    k.I("v_lshlrev_b32", v(ib), 6, v(vg))
    k.I("v_add_u32", v(ib), 512, v(ib))
    k.I("v_add_u32", v(ib), v(ib), v(vi))
    for r in range(3):
        k.I("v_mov_b32", v(inc[r]), 64 * (r + 1))
    k.L(lab_tw)
    k.I("v_lshlrev_b32", v(ib), 2, v(ib))
    k.I("ds_write_b32", v(ib), v(P[0]), mods="offset:%d" % TB)
    for r in range(3):
        k.I("v_add_u32", v(inc[r]), v(inc[r]), v(ib))
        k.I("ds_write_b32", v(inc[r]), v(P[0] + r + 1), mods="offset:%d" % TB)
    k.L(lab_t3)
    k.wait(lgkm=0)
    k.I("s_barrier")
    w = R.a(9)
    E = R.a(4, 4); OD = R.a(4, 4)
    k.I("v_lshlrev_b32", v(t[0]), 3, "v0")
    k.I("v_sub_u32", v(t[0]), 2047, v(t[0]))
    for j in range(9):
        k.I("v_subrev_u32", v(t[1]), j, v(t[0]))
        if j == 8:
            k.I("v_max_i32", v(t[1]), 0, v(t[1]))
        k.I("v_cvt_f32_u32", v(t[3]), v(t[1]))
        k.I("v_cvt_pk_bf16_f32", v(t[3]), v(t[3]), v(t[3]))
        k.I("v_and_b32", v(t[3]), "0xffff", v(t[3]))
        k.I("v_subrev_u32", v(t[3]), 17024, v(t[3]))
        k.I("v_cmp_gt_u32", "vcc", 256, v(t[1]))
        k.I("v_cndmask_b32", v(t[3]), v(t[3]), v(t[1]), "vcc")
        k.I("v_lshlrev_b32", v(t[3]), 2, v(t[3]))
        k.I("ds_read_b32", v(w + j), v(t[3]), mods="offset:%d" % TB)
    k.I("v_cmp_gt_u32", "vcc", 8, v(t[0]))
    k.I("v_cndmask_b32", v(w + 8), v(w + 8), 0, "vcc")
    for i in range(4):
        k.I("v_cvt_pk_bf16_f32", v(E + i), v(w + 2 * i), v(w + 2 * i + 1))
        k.I("v_cvt_pk_bf16_f32", v(OD + i), v(w + 2 * i + 1), v(w + 2 * i + 2))
    k.I("s_mul_i32", s(S_T0), s(S_MT), LY.KRP)
    k.I("s_add_u32", s(S_T0), s(S_T0), LY.KR_OFF)
    k.I("v_lshlrev_b32", v(t[1]), 4, "v0")
    k.I("buffer_store_dwordx4", vr(E, 4), v(t[1]), sr(S_WS, 4), s(S_T0), mods="offen")
    k.I("s_add_u32", s(S_T1), s(S_T0), LY.KRV)
    k.I("buffer_store_dwordx4", vr(OD, 4), v(t[1]), sr(S_WS, 4), s(S_T1), mods="offen")
    for r in range(4):
        k.I("v_mov_b32", v(Ah + r), 0)
    k.I("v_mul_u32_u24", v(t[1]), LY.KRV, "v0")
    k.I("v_cmp_gt_u32", "vcc", 2, "v0")
    k.I("s_and_saveexec_b64", sr(S_SAVE, 2), "vcc")
    k.I("s_add_u32", s(S_T1), s(S_T0), 4096)
    k.I("buffer_store_dwordx4", vr(Ah, 4), v(t[1]), sr(S_WS, 4), s(S_T1), mods="offen")
    k.I("s_mov_b64", "exec", sr(S_SAVE, 2))
    k.I("s_endpgm")


def build_k1():
    k = Kernel("k1_kernel")
    prologue_ptrs(k, [(4, 0), (6, 8), (8, 104)])
    lab_kgen = k.newlabel("kgen")
    lab_xt = k.newlabel("xt")
    lab_gate = k.newlabel("gate")
    lab_exit = k.newlabel("exit")
    k.wait(lgkm=0)
    make_srd(k, S_X, 4, LY.S * LY.D * 2)
    make_srd(k, S_WS, 8, LY.WS_USED)
    k.I("s_cmp_ge_u32", "s2", 1120)
    k.I("s_cbranch_scc1", lab_exit)
    k.I("s_cmp_ge_u32", "s2", 1056)
    k.I("s_cbranch_scc1", lab_gate)
    k.I("s_cmp_ge_u32", "s2", 768)
    k.I("s_cbranch_scc1", lab_xt)
    k.I("s_cmp_ge_u32", "s2", 192)
    k.I("s_cbranch_scc1", lab_kgen)
    make_srd(k, S_W, 6, 576 * 1728 * 2)
    import os
    if os.environ.get("K1SKIP") == "gemm":
        k.I("s_endpgm")
    role_gemm1(k)
    k.L(lab_kgen)
    prologue_ptrs(k, [(44, 32), (48, 40), (52, 48), (56, 56), (60, 64)])
    k.wait(lgkm=0)
    for sd in (44, 48, 52, 56):
        k.I("s_mov_b32", s(sd + 2), 576 * 128 * 2)
        k.I("s_mov_b32", s(sd + 3), "0x00020000")
    k.I("s_mov_b32", s(62), 576 * 2)
    k.I("s_mov_b32", s(63), "0x00020000")
    role_kgen(k)
    k.L(lab_xt)
    role_xt(k)
    k.L(lab_gate)
    prologue_ptrs(k, [(4, 80)])
    k.wait(lgkm=0)
    make_srd(k, S_W, 4, 576 * 2)
    role_gate(k)
    k.L(lab_exit)
    k.I("s_endpgm")
    return k, dict(grid=1120, block=256, lds=LDS_K1)
```
